```python
import torch

def _softmax(x, axis=-1):
    return torch.softmax(x, dim=axis)
def _gelu(x):
    return torch.nn.functional.gelu(x, approximate="tanh")
def _silu(x):
    return torch.nn.functional.silu(x)
def _sigmoid(x):
    return torch.sigmoid(x)
def _layernorm(x, axis=-1, eps=1e-5):
    m = x.mean(dim=axis, keepdim=True)
    v = x.var(dim=axis, keepdim=True, unbiased=False)
    return (x - m) / torch.sqrt(v + eps)
def _scatter_add(tgt, idx, src, axis=0):
    return tgt.clone().index_add_(axis, idx, src)
def _segment_sum(src, seg, n):
    out = torch.zeros((n,) + src.shape[1:], dtype=src.dtype)
    return out.index_add_(0, seg, src)
def _pad(x, pw):
    flat = tuple(v for pair in reversed(pw) for v in pair)
    return torch.nn.functional.pad(x, flat)

kernel_name = 'standalone__batchnorm__sampling'

def setup_inputs():

    _w = (lambda a: (lambda t: t.to(torch.bfloat16) if t.is_floating_point() else t)(torch.as_tensor(a)))
    B, S, C = 1024, 16, 448
    K = 3
    return {
        "x": _w((lambda *s: torch.randn(*s, dtype=torch.bfloat16) * 0.05)(B, S, C)),
        "w": _w((lambda *s: torch.randn(*s, dtype=torch.bfloat16) * 0.05)(K, C, C) * (1.0 / (K * C) ** 0.5)),
        "mean": _w((lambda *s: torch.randn(*s, dtype=torch.bfloat16) * 0.05)(C) * 0.1),
        "var": _w(torch.abs((lambda *s: torch.randn(*s, dtype=torch.bfloat16) * 0.05)(C)) + 0.5),
        "g": _w((lambda *s: torch.randn(*s, dtype=torch.bfloat16) * 0.05)(C) + 1.0),
        "b": _w((lambda *s: torch.randn(*s, dtype=torch.bfloat16) * 0.05)(C) * 0.1),
    }

def reference(x, w, mean, var, g, b):
    K = 3
    P = K // 2
    S = x.shape[1]
    xp = _pad(x, ((0, 0), (P, P), (0, 0)))
    y = sum(torch.einsum('bsc,cd->bsd', xp[:, k:k + S, :], w[k]) for k in range(K))
    inv_std = 1.0 / torch.sqrt(var + 1e-5)
    y = (y - mean) * (g * inv_std) + b
    return _silu(y)
```

```python
KNAME = "standalone__batchnorm__sampling_kernel"
HDR_COMMENT = """; Kernarg layout for this problem (72 bytes, ptrs only, base s[0:1]):
"""
def header(grid, block, lds):
    return HDR_COMMENT + f"""; @launch grid=({grid},1,1) block=({block},1,1) lds={lds}
.amdgcn_target "amdgcn-amd-amdhsa--gfx950"
.text
.globl {KNAME}
.p2align 8
.type {KNAME},@function
{KNAME}:
"""
def footer(vgpr=256, sgpr=102, accum=256, extra=""):
    return f""".section .rodata,"a"
.p2align 6
.amdhsa_kernel {KNAME}
  .amdhsa_next_free_vgpr {vgpr}
  .amdhsa_next_free_sgpr {sgpr}
  .amdhsa_accum_offset {accum}
  .amdhsa_group_segment_fixed_size 0
  .amdhsa_kernarg_size 72
  .amdhsa_user_sgpr_count 2
  .amdhsa_user_sgpr_kernarg_segment_ptr 1
  .amdhsa_system_sgpr_workgroup_id_x 1
{extra}.end_amdhsa_kernel
"""
XB = 1024*16*448*2
WB = 3*448*448*2
```

```python
import sys, re
sys.path.insert(0, 'tools')
from common import *

LOG2E = 0x3fb8aa3b
WSLOT = 21504
XBUF = 32768


class Gen:
    def __init__(self, P=2, LEAD=2, diag=False, store_pol='', dma_mode=0):
        self.P = P
        self.LEAD = LEAD
        self.diag = diag
        self.store_pol = store_pol
        self.dma_mode = dma_mode
        self.NW = 4
        self.W0 = 2 * XBUF
        self.CONST = self.W0 + self.NW * WSLOT
        self.ZERO = self.CONST + 896
        self.LDS = self.ZERO + 128
        self.nstamp = 0

    def acc(self, s, n):
        return 128 + (n * 4 + s) * 4
    SC = 64
    SH = 92
    V_XD = (2, 3)
    V_WD = (4, 5, 6, 7, 8, 9)
    V_WA = (10, 11)
    V_XA = (12, 13)
    V_X0 = (14, 15, 16, 17)
    V_X5 = (18, 19, 20, 21)
    V_ST = (22, 23)
    V_CA = 24
    V_PAR = (26, 27, 28, 29)
    V_T = 30
    V_PK = 48
    V_ET = 240

    def xreg(self, t, i):
        P = self.P
        nsets = max(2, P + 1)
        return (t % nsets) * 24 + i * 4

    def stamp(self):
        if not self.diag:
            return []
        k = self.nstamp
        self.nstamp += 1
        assert k < 18
        return [dict(k='smem', t=f"s_memtime s[{64+2*k}:{65+2*k}]")]

    def dma_x(self, c):
        buf = (c % 2) * XBUF
        out = []
        out.append(dict(k='salu', t=f"s_add_u32 s41, s40, {c*128}", sow=('x', c)))
        for s in range(4):
            for h in range(2):
                out.append(dict(k='salu', t=f"s_add_u32 m0, s44, {buf + s*1152 + h*1024}", m0=('x', c, s, h)))
                out.append(dict(k='vmem', t=f"buffer_load_dwordx4 v{self.V_XD[h]}, s[24:27], s41 offen offset:{s*896} lds", tag=('x', c), dma=('x', c, s, h), so=('x', c)))
        return out

    def dma_w(self, t):
        slot = self.W0 + (t % self.NW) * WSLOT
        out = []
        out.append(dict(k='salu', t=f"s_add_u32 s46, s42, {t*28672}", sow=('w', t)))
        for i in range(6):
            if i % 4 == 0:
                out.append(dict(k='salu', t=f"s_add_u32 m0, s45, {slot + (i//4)*4096}", m0=('w', t, i // 4)))
            ins = f"buffer_load_dwordx4 v{self.V_WD[i]}, s[28:31], s46 offen offset:{(i%4)*1024} lds"
            if i == 5:
                ins = "s_mov_b64 exec, 0xffff\n" + ins + "\ns_mov_b64 exec, -1"
            out.append(dict(k='vmem', t=ins, tag=('w', t), dma=('w', t, i // 4), so=('w', t)))
        return out

    def rd_w(self, t, n, tap, h, dst):
        slot = t % self.NW
        base = self.V_WA[slot // 2]
        off = (slot % 2) * WSLOT + (tap * 32 + 16 * h) * 224 + n * 32
        d = dst + 2 * h
        return dict(k='ds', t=f"ds_read_b64_tr_b16 a[{d}:{d+1}], v{base} offset:{off}", w=[('a', d), ('a', d + 1)], need=('w', t))

    def rd_x(self, t, i):
        c, j = t // 2, t % 2
        buf = c % 2
        d = self.xreg(t, i)
        if i == 0:
            a, off = self.V_X0[buf * 2 + j], 0
        elif i == 5:
            a, off = self.V_X5[buf * 2 + j], 0
        else:
            a, off = self.V_XA[j], buf * XBUF + (i - 1) * 2048
        return dict(k='ds', t=f"ds_read_b128 a[{d}:{d+3}], v{a} offset:{off}", w=[('a', d + q) for q in range(4)], need=('x', c))

    def mfma(self, s, n, wreg, xr, first):
        a = self.acc(s, n)
        c = "0" if first else f"v[{a}:{a+3}]"
        return dict(k='mfma', t=f"v_mfma_f32_16x16x32_bf16 v[{a}:{a+3}], a[{wreg}:{wreg+3}], a[{xr}:{xr+3}], {c}",
                    r=[('a', wreg + q) for q in range(4)] + [('a', xr + q) for q in range(4)],
                    w=[('v', a + q) for q in range(4)])

    def epi_tile(self, s, n, idx):
        a = self.acc(s, n)
        T = self.V_ET + (idx % 4) * 4
        o = []
        V = lambda t, r, w, tr=False: dict(k='trans' if tr else 'valu', t=t, r=[('v', x) for x in r], w=[('v', x) for x in w])
        for i in range(4):
            o.append(V(f"v_fma_f32 v{a+i}, v{a+i}, v{self.SC+n*4+i}, v{self.SH+n*4+i}", [a + i, self.SC + n * 4 + i, self.SH + n * 4 + i], [a + i]))
        for i in range(4):
            o.append(V(f"v_exp_f32_e64 v{T+i}, -v{a+i}", [a + i], [T + i], True))
        for i in range(4):
            o.append(V(f"v_fma_f32 v{T+i}, v{T+i}, s50, s50", [T + i], [T + i]))
        for i in range(4):
            o.append(V(f"v_rcp_f32 v{T+i}, v{T+i}", [T + i], [T + i], True))
        for i in range(4):
            o.append(V(f"v_mul_f32 v{T+i}, v{a+i}, v{T+i}", [a + i, T + i], [T + i]))
        if n < 6:
            pk = self.V_PK + s * 4
            half = n % 2
        else:
            pk = self.V_PK + (s // 2) * 4
            half = s % 2
        d = pk + 2 * half
        o.append(V(f"v_cvt_pk_bf16_f32 v{d}, v{T}, v{T+1}", [T, T + 1], [d]))
        o.append(V(f"v_cvt_pk_bf16_f32 v{d+1}, v{T+2}, v{T+3}", [T + 2, T + 3], [d + 1]))
        if half == 1:
            x = V(f"v_permlane16_swap_b32 v{pk}, v{pk+2}", [pk, pk + 2], [pk, pk + 2]); x['perm'] = True
            o.append(x)
            x = V(f"v_permlane16_swap_b32 v{pk+1}, v{pk+3}", [pk + 1, pk + 3], [pk + 1, pk + 3]); x['perm'] = True
            o.append(x)
            if n < 6:
                va, off = self.V_ST[0], s * 896 + (n // 2) * 64
            else:
                va, off = self.V_ST[1], (s - 1) * 896 + 192
            o.append(dict(k='vmem', t=f"buffer_store_dwordx4 v[{pk}:{pk+3}], v{va}, s[32:35], s43 offen offset:{off} {self.store_pol}".rstrip(),
                          r=[('v', pk + q) for q in range(4)], store=True, tag=('st',)))
        return o

    def consts(self):
        m, v, g, b = self.V_PAR
        T = self.V_T
        V = lambda t, r, w, tr=False: dict(k='trans' if tr else 'valu', t=t, r=[('v', x) for x in r], w=[('v', x) for x in w])
        o = []

        def unpack(src, lo, hi):
            o.append(V(f"v_lshlrev_b32 v{lo}, 16, v{src}", [src], [lo]))
            o.append(V(f"v_and_b32 v{hi}, 0xffff0000, v{src}", [src], [hi]))

        def rnd(lo, hi):
            o.append(V(f"v_cvt_pk_bf16_f32 v{T+10}, v{lo}, v{hi}", [lo, hi], [T + 10]))
            unpack(T + 10, lo, hi)
        o[:] = []
        first = V(f"v_lshlrev_b32 v{T}, 16, v{v}", [v], [T]); first['needvm'] = ('par',)
        o.append(first)
        o.append(V(f"v_and_b32 v{T+1}, 0xffff0000, v{v}", [v], [T + 1]))
        o.append(V(f"v_add_f32 v{T}, 0x3727c5ac, v{T}", [T], [T]))
        o.append(V(f"v_add_f32 v{T+1}, 0x3727c5ac, v{T+1}", [T + 1], [T + 1]))
        rnd(T, T + 1)
        o.append(V(f"v_sqrt_f32 v{T}, v{T}", [T], [T], True))
        o.append(V(f"v_sqrt_f32 v{T+1}, v{T+1}", [T + 1], [T + 1], True))
        unpack(g, T + 2, T + 3)
        rnd(T, T + 1)
        o.append(V(f"v_rcp_f32 v{T}, v{T}", [T], [T], True))
        o.append(V(f"v_rcp_f32 v{T+1}, v{T+1}", [T + 1], [T + 1], True))
        unpack(m, T + 4, T + 5)
        rnd(T, T + 1)
        o.append(V(f"v_mul_f32 v{T}, v{T}, v{T+2}", [T, T + 2], [T]))
        o.append(V(f"v_mul_f32 v{T+1}, v{T+1}, v{T+3}", [T + 1, T + 3], [T + 1]))
        unpack(b, T + 6, T + 7)
        rnd(T, T + 1)
        o.append(V(f"v_fma_f32 v{T+6}, -v{T+4}, v{T}, v{T+6}", [T + 4, T, T + 6], [T + 6]))
        o.append(V(f"v_fma_f32 v{T+7}, -v{T+5}, v{T+1}, v{T+7}", [T + 5, T + 1, T + 7], [T + 7]))
        o.append(V(f"v_mul_f32 v{T}, s50, v{T}", [T], [T]))
        o.append(V(f"v_mul_f32 v{T+1}, s50, v{T+1}", [T + 1], [T + 1]))
        o.append(V(f"v_mul_f32 v{T+6}, s50, v{T+6}", [T + 6], [T + 6]))
        o.append(V(f"v_mul_f32 v{T+7}, s50, v{T+7}", [T + 7], [T + 7]))
        o.append(dict(k='ds', t=f"ds_write_b64 v25, v[{T}:{T+1}]", r=[('v', T), ('v', T + 1)], w=[]))
        o.append(dict(k='ds', t=f"ds_write_b64 v25, v[{T+6}:{T+7}] offset:448", r=[('v', T + 6), ('v', T + 7)], w=[]))
        rd = []
        for n in range(7):
            d = self.SC + n * 4
            rd.append(dict(k='ds', t=f"ds_read_b128 v[{d}:{d+3}], v{self.V_CA} offset:{n*64}", w=[('v', d + q) for q in range(4)]))
            d = self.SH + n * 4
            rd.append(dict(k='ds', t=f"ds_read_b128 v[{d}:{d+3}], v{self.V_CA} offset:{448+n*64}", w=[('v', d + q) for q in range(4)]))
        return o, rd

    def prologue(self):
        s = ""
        if self.diag:
            s += "s_memtime s[60:61]\ns_memrealtime s[62:63]\n"
        s += f"""s_load_dwordx4 s[4:7], s[0:1], 0
s_load_dwordx8 s[12:19], s[0:1], 16
s_load_dwordx2 s[20:21], s[0:1], 48
"""
        if self.diag:
            s += "s_load_dwordx2 s[22:23], s[0:1], 64\n"
        s += f"""s_cmp_ge_u32 s2, 256
s_cbranch_scc1 L_end
v_lshrrev_b32 v30, 6, v0
v_and_b32 v1, 63, v0
v_readfirstlane_b32 s36, v30
s_and_b32 s38, s2, 7
s_lshr_b32 s39, s2, 3
s_and_b32 s37, s39, 3
s_lshr_b32 s39, s39, 2
s_lshl_b32 s38, s38, 3
s_add_u32 s38, s38, s39
s_mul_i32 s40, s38, 229376
s_mul_i32 s39, s36, 3584
s_add_u32 s40, s40, s39
s_mul_i32 s42, s37, 224
s_add_u32 s43, s40, s42
s_lshl_b32 s44, s36, 13
s_mul_i32 s45, s36, 5376
s_mov_b32 s50, {LOG2E:#x}
v_lshrrev_b32 v31, 3, v1
v_and_b32 v32, 7, v1
v_lshrrev_b32 v33, 1, v31
v_xor_b32 v32, v32, v33
v_xor_b32 v33, 4, v32
v_mul_u32_u24 v31, 14336, v31
v_lshl_add_u32 v{self.V_XD[0]}, v32, 4, v31
v_lshl_add_u32 v{self.V_XD[1]}, v33, 4, v31
v_add_u32 v{self.V_XD[1]}, 114688, v{self.V_XD[1]}
s_mul_i32 s39, s36, 24
"""
        for i in range(6):
            d = self.V_WD[i]
            s += f"""v_add_u32 v31, {64*i}, v1
v_mul_u32_u24 v32, 4682, v31
v_lshrrev_b32 v32, 16, v32
v_mul_u32_u24 v33, 14, v32
v_sub_u32 v31, v31, v33
v_add_u32 v32, s39, v32
v_lshrrev_b32 v33, 5, v32
v_and_b32 v34, 12, v32
v_bfe_u32 v35, v32, 4, 1
v_and_b32 v32, 3, v32
v_lshl_add_u32 v32, v34, 1, v32
v_lshl_add_u32 v32, v35, 2, v32
v_mul_u32_u24 v33, 448, v33
v_add_u32 v32, v32, v33
v_mul_u32_u24 v32, 896, v32
v_lshl_add_u32 v{d}, v31, 4, v32
"""
            if i % 4:
                s += f"v_subrev_u32 v{d}, {(i%4)*1024}, v{d}\n"
        s += f"""s_waitcnt lgkmcnt(0)
s_mov_b32 s24, s4
s_mov_b32 s25, s5
s_mov_b32 s26, {XB}
s_mov_b32 s27, 0x20000
s_mov_b32 s28, s6
s_mov_b32 s29, s7
s_mov_b32 s30, {WB}
s_mov_b32 s31, 0x20000
"""
        return s

    def prologue2(self):
        s = f"""s_mov_b32 s32, s20
s_mov_b32 s33, s21
s_mov_b32 s34, {XB}
s_mov_b32 s35, 0x20000
v_lshrrev_b32 v31, 2, v1
v_and_b32 v32, 3, v1
v_mul_u32_u24 v31, 224, v31
v_lshl_add_u32 v31, v32, 3, v31
v_add_u32 v{self.V_WA[0]}, {self.W0}, v31
v_add_u32 v{self.V_WA[1]}, {self.W0 + 2*WSLOT}, v31
v_and_b32 v31, 15, v1
v_lshrrev_b32 v32, 4, v1
v_lshrrev_b32 v33, 1, v31
v_xor_b32 v33, v33, v32
v_lshlrev_b32 v34, 7, v31
v_lshl_add_u32 v34, v33, 4, v34
v_add_u32 v{self.V_XA[0]}, s44, v34
v_xor_b32 v{self.V_XA[1]}, 64, v{self.V_XA[0]}
v_mov_b32 v35, {self.ZERO}
s_cmp_eq_u32 s36, 0
s_cselect_b64 s[52:53], -1, 0
s_cmp_eq_u32 s36, 3
s_cselect_b64 s[54:55], -1, 0
"""
        for buf in range(2):
            for j in range(2):
                d0 = self.V_X0[buf * 2 + j]; d5 = self.V_X5[buf * 2 + j]
                s += f"v_add_u32 v{d0}, {buf*XBUF - 2048}, v{self.V_XA[j]}\n"
                s += f"v_add_u32 v{d5}, {buf*XBUF + 8192}, v{self.V_XA[j]}\n"
                s += f"v_cndmask_b32 v{d0}, v{d0}, v35, s[52:53]\n"
                s += f"v_cndmask_b32 v{d5}, v{d5}, v35, s[54:55]\n"
        s += f"""v_mov_b32 v36, 0
v_mov_b32 v37, 0
v_mov_b32 v38, 0
v_mov_b32 v39, 0
ds_write_b128 v35, v[36:39]
v_mul_u32_u24 v33, 14336, v31
v_lshrrev_b32 v34, 1, v32
v_lshl_add_u32 v33, v34, 4, v33
v_and_b32 v34, 1, v32
v_lshl_add_u32 v{self.V_ST[0]}, v34, 5, v33
v_mul_u32_u24 v34, 896, v34
v_add_u32 v{self.V_ST[1]}, v34, v33
v_lshlrev_b32 v32, 4, v32
v_add_u32 v{self.V_CA}, {self.CONST}, v32
"""
        return s

    def par_loads(self):
        pre = f"""v_min_u32 v31, 55, v1
v_lshlrev_b32 v25, 3, v31
v_add_u32 v25, {self.CONST}, v25
v_lshlrev_b32 v31, 2, v31
v_add_u32 v31, s42, v31"""
        o = [dict(k='raw', t=pre)]
        for q in range(4):
            o.append(dict(k='vmem', t=f"global_load_dword v{self.V_PAR[q]}, v31, s[{12+2*q}:{13+2*q}]", tag=('par',)))
        return o

    def build(self):
        P, LEAD = self.P, self.LEAD
        T1 = 14 - P
        WR = 128
        mf = []
        gaps = {}

        def put(g, items):
            if not isinstance(items, list):
                items = [items]
            gaps.setdefault(max(g, -1), []).extend(items)
        G1 = 7 * T1
        for t in range(T1):
            for n in range(7):
                G = 7 * t + n
                wb = WR + (G % (LEAD + 1)) * 12
                for s in range(4):
                    for tap in range(3):
                        mf.append(self.mfma(s, n, wb + tap * 4, self.xreg(t, s + tap), t == 0 and tap == 0))
        W2 = WR + (LEAD + 1) * 12
        assert W2 + 2 * 12 * P <= 256
        tile_end = {}
        for n in range(7):
            for s in range(4):
                for t in range(T1, 14):
                    for tap in range(3):
                        wb = W2 + (n % 2) * 12 * P + (t - T1) * 12
                        mf.append(self.mfma(s, n, wb + tap * 4, self.xreg(t, s + tap), False))
                tile_end[(s, n)] = len(mf) - 1
        NM = len(mf)
        if P == 0:
            for n in range(7):
                for s in range(4):
                    tile_end[(s, n)] = 84 * 13 + n * 12 + s * 3 + 2
        def bpos(t):
            return 84 * t - 12 * LEAD - 1
        nbar = T1 + (1 if P else 0)
        for t in range(nbar):
            need = []
            if t < T1:
                need = [('w', t), ('x', t // 2)]
            else:
                need = [('w', tt) for tt in range(T1, 14)] + [('x', tt // 2) for tt in range(T1, 14)]
            put(bpos(t), [dict(k='bar', need=need, idx=t)] + self.stamp())
        for G in range(G1):
            t, n = divmod(G, 7)
            wb = WR + (G % (LEAD + 1)) * 12
            g0 = 12 * (G - LEAD)
            k = 0
            for tap in range(3):
                for h in range(2):
                    put(g0 + 2 * k - 1 if G >= LEAD else -1, self.rd_w(t, n, tap, h, wb + tap * 4))
                    k += 1
            if G == 0:
                for i in range(6):
                    put(-1, self.rd_x(0, i))
        for t in range(1, T1):
            for i in range(6):
                put(bpos(t) + 1 + 2 * i, self.rd_x(t, i))
        if P:
            g = bpos(T1)
            items = []
            for t in range(T1, 14):
                for tap in range(3):
                    for h in range(2):
                        items.append(self.rd_w(t, 0, tap, h, W2 + (t - T1) * 12 + tap * 4))
                for i in range(3):
                    items.append(self.rd_x(t, i))
            for t in range(T1, 14):
                for i in range(3, 6):
                    items.append(self.rd_x(t, i))
            span = 12 * LEAD + 3 * P
            for k, it in enumerate(items):
                put(g + k * span // len(items), it)
            for n in range(1, 7):
                g0 = 84 * T1 + (n - 1) * 12 * P
                if n == 1:
                    g0 += 3 * P
                span = 84 * T1 + n * 12 * P - 8 - g0
                items = []
                for t in range(T1, 14):
                    for tap in range(3):
                        for h in range(2):
                            items.append(self.rd_w(t, n, tap, h, W2 + (n % 2) * 12 * P + (t - T1) * 12 + tap * 4))
                for k, it in enumerate(items):
                    put(g0 + k * span // len(items), it)
        pro = self.dma_x(0) + self.dma_w(0) + self.dma_w(1) + self.par_loads()
        per = {}
        per[0] = self.dma_x(1) + self.dma_w(2)
        per[1] = self.dma_w(3)
        for t in range(2, 14):
            l = []
            if t % 2 == 0 and t // 2 + 1 < 7:
                l += self.dma_x(t // 2 + 1)
            if t + 2 < 14:
                l += self.dma_w(t + 2)
            per[t] = l
        for t, l in per.items():
            if not l:
                continue
            assert t < nbar
            g0 = max(bpos(t) + 14, 0)
            g1 = bpos(t + 1) - 6
            nv = sum(1 for x in l if x['k'] == 'vmem')
            step = (g1 - g0) / nv
            if self.dma_mode == 1:
                step = min(step, 4)
            k = 0
            for it in l:
                g = g0 + int(k * step)
                g = g - (g % 2)
                if it['k'] == 'vmem':
                    put(g, it)
                    k += 1
                else:
                    put(g - 1, it)
        cv, crd = self.consts()
        g0 = bpos(3) + 2
        for k, it in enumerate(cv):
            put(g0 + k, it)
        g0 = bpos(5) + 14
        for k, it in enumerate(crd):
            put(g0 + 4 * k, it)
        tail = []
        order = [(s, n) for n in range(7) for s in range(4)]
        if P:
            g = 0
            for idx, (s, n) in enumerate(order):
                its = self.epi_tile(s, n, idx)
                start = tile_end[(s, n)] + 3
                span = 3 * P
                cost = [8 if x['k'] == 'trans' else 4 for x in its]
                tot = sum(cost)
                acc = 0
                for it, c in zip(its, cost):
                    gg = start + acc * span // tot
                    acc += c
                    if gg >= NM - 1:
                        tail.append(it)
                    else:
                        put(gg, it)
        else:
            for idx, (s, n) in enumerate(order):
                tail += self.epi_tile(s, n, idx)
        seq = list(pro) + [dict(k='raw', t=self.prologue2())] + self.stamp()
        seq.append(dict(k='raw', t="s_waitcnt lgkmcnt(0)"))
        prio = {'bar': 0, 'smem': 0, 'ds': 1, 'salu': 3, 'valu': 2, 'trans': 2, 'vmem': 2, 'raw': 2}
        for g in range(-1, NM):
            if g >= 0:
                seq.append(mf[g])
            l = gaps.get(g, [])
            if g >= 0:
                l = sorted(l, key=lambda x: prio[x['k']])
            seq += l
        seq += self.stamp()
        seq += tail
        seq += self.stamp()
        self.gaps = gaps
        return self.finalize(seq)

    def finalize(self, seq):
        out = []
        lds_ops = []
        lds_done = 0
        pend = {}
        vm_ops = []
        vm_done = 0
        landed = set()
        nm = 0
        hist = []

        def emit(it):
            out.append(it)
            n = len([l for l in it['t'].split('\n') if l.strip() and not l.strip().startswith(';')])
            for _ in range(n - 1):
                hist.append(dict(k='x'))
            hist.append(it)

        def dist_since(pred):
            d = 0
            for h in reversed(hist):
                if pred(h):
                    return d
                d += h.get('states', 1)
                if d > 24:
                    break
            return 99
        nwait = 0
        cur_m0 = None
        cur_so = {}
        for it in seq:
            k = it['k']
            if k == 'bar':
                last = -1
                for tg in it['need']:
                    idxs = [i for i, x in enumerate(vm_ops) if x == tg]
                    assert idxs, ("barrier needs un-issued group", tg, it['idx'])
                    last = max(last, idxs[-1])
                if last + 1 > vm_done:
                    N = len(vm_ops) - (last + 1)
                    assert N <= 63
                    emit(dict(k='wait', t=f"s_waitcnt vmcnt({N})"))
                    vm_done = last + 1
                emit(dict(k='salu', t="s_barrier"))
                full = {}
                for i, x in enumerate(vm_ops):
                    full[x] = full.get(x, True) and i < vm_done
                landed = {x for x, f in full.items() if f}
                continue
            if it.get('m0'):
                cur_m0 = it['m0']
            if it.get('sow'):
                cur_so[it['sow'][0]] = it['sow']
            if it.get('dma'):
                assert cur_m0 == it['dma'], (cur_m0, it)
                assert cur_so[it['so'][0]] == it['so']
            if 'need' in it:
                assert it['need'] in landed, ("read before landed", it)
            if 'needvm' in it:
                idxs = [i for i, x in enumerate(vm_ops) if x == it['needvm']]
                assert idxs[-1] < vm_done
            need = -1
            for r in it.get('r', []) + (it.get('w', []) if k != 'ds' else []):
                if r in pend and pend[r] >= lds_done:
                    need = max(need, pend[r])
            if need >= 0:
                j = need
                while j + 1 < len(lds_ops) and lds_ops[j + 1] <= nm - 7:
                    j += 1
                N = min(len(lds_ops) - (j + 1), 15)
                emit(dict(k='wait', t=f"s_waitcnt lgkmcnt({N})"))
                nwait += 1
                lds_done = len(lds_ops) - N
            rs = set(it.get('r', [])); ws = set(it.get('w', []))
            pad = 0
            if k in ('valu', 'trans', 'vmem', 'ds'):
                d = dist_since(lambda h: h['k'] == 'mfma' and (set(h['w']) & (rs | ws)))
                pad = max(pad, 8 - d)
            if k == 'valu':
                d = dist_since(lambda h: h['k'] == 'trans' and (set(h['w']) & rs))
                pad = max(pad, 1 - d)
            if it.get('perm'):
                d = dist_since(lambda h: h['k'] in ('valu', 'trans') and (set(h['w']) & rs))
                pad = max(pad, 2 - d)
            if k in ('valu', 'trans'):
                d = dist_since(lambda h: h.get('store') and (set(h['r']) & ws))
                pad = max(pad, 2 - d)
            if it.get('dma') and not it['t'].startswith('s_mov_b64 exec'):
                d = dist_since(lambda h: h.get('m0'))
                pad = max(pad, 1 - d)
            if pad > 0:
                emit(dict(k='nop', t=f"s_nop {pad-1}", states=pad))
            emit(it)
            if k == 'ds':
                for r in it.get('w', []):
                    pend[r] = len(lds_ops)
                lds_ops.append(nm)
            if k == 'raw' and 'lgkmcnt(0)' in it['t']:
                lds_done = len(lds_ops)
            if k == 'vmem':
                vm_ops.append(it['tag'])
            if k == 'mfma':
                nm += 1
        self.nwait = nwait
        return out

    def text(self):
        seq = self.build()
        s = header(256, 256, self.LDS)
        s += self.prologue()
        s += '\n'.join(x['t'].rstrip('\n') for x in seq) + '\n'
        if self.diag:
            s += "s_waitcnt vmcnt(0)\ns_memtime s[56:57]\ns_memrealtime s[58:59]\ns_waitcnt lgkmcnt(0)\n"
            s += "v_mov_b32 v2, 0\nv_mov_b32 v3, 0\n"
            for k in range(self.nstamp):
                s += f"s_sub_u32 s{64+2*k}, s{64+2*k}, s60\nv_writelane_b32 v2, s{64+2*k}, {k}\n"
            s += f"s_sub_u32 s56, s56, s60\nv_writelane_b32 v2, s56, {self.nstamp}\nv_writelane_b32 v3, s58, 62\nv_writelane_b32 v3, s62, 63\n"
            s += """s_mov_b32 s24, s22
s_mov_b32 s25, s23
s_mov_b32 s26, 0x1000000
s_mov_b32 s27, 0x20000
v_lshlrev_b32 v4, 3, v0
s_lshl_b32 s3, s2, 11
buffer_store_dwordx2 v[2:3], v4, s[24:27], s3 offen
"""
        s += "L_end:\ns_endpgm\n"
        s += footer(512, 102, 256)
        return s


if __name__ == '__main__':
    import argparse
    ap = argparse.ArgumentParser()
    ap.add_argument('out')
    ap.add_argument('-P', type=int, default=2)
    ap.add_argument('--lead', type=int, default=2)
    ap.add_argument('--diag', action='store_true')
    ap.add_argument('--pol', default='')
    ap.add_argument('--dma', type=int, default=0)
    a = ap.parse_args()
    g = Gen(P=a.P, LEAD=a.lead, diag=a.diag, store_pol=a.pol, dma_mode=a.dma)
    t = g.text()
    open(a.out, 'w').write(t)
    print("lines", t.count('\n'), "lgkm waits", g.nwait, "stamps", g.nstamp, "lds", g.LDS)
```

```python
import sys, re
sys.path.insert(0, 'tools')
from common import *

LOG2E = 0x3fb8aa3b
WSLOT = 21504
XBUF = 32768


class Gen:
    def __init__(self, P=2, LEAD=2, diag=False, store_pol='', dma_mode=0, stampsel=None, nostore=False, store_pol0='', warm=1, order=1):
        self.store_pol0 = store_pol0
        self.warm = warm
        self.order = order
        self.stampsel = stampsel
        self.nostore = nostore
        self.stampnames = []
        self.P = P
        self.LEAD = LEAD
        self.diag = diag
        self.store_pol = store_pol
        self.dma_mode = dma_mode
        self.NW = 4
        self.W0 = 2 * XBUF
        self.CONST = self.W0 + self.NW * WSLOT
        self.ZERO = self.CONST + 896
        self.LDS = self.ZERO + 128
        self.nstamp = 0

    def acc(self, s, n):
        return 128 + (n * 4 + s) * 4
    SC = 64
    SH = 92
    V_XD = (2, 3)
    V_WD = (4, 5, 6, 7, 8, 9)
    V_WA = (10, 11)
    V_WS = (120, 121)
    V_CS = 122
    V_XA = (12, 13)
    V_X0 = (14, 15, 16, 17)
    V_X5 = (18, 19, 20, 21)
    V_ST = (22, 23)
    V_CA = 24
    V_PAR = (26, 27, 28, 29)
    V_T = 30
    V_PK = 48
    V_ET = 240

    def xreg(self, t, i):
        P = self.P
        nsets = max(2, P + 1)
        return (t % nsets) * 24 + i * 4

    def stamp(self, name=''):
        if not self.diag or (self.stampsel and not any(name.startswith(p) for p in self.stampsel)):
            return []
        return [dict(k='smem', t="STAMP", name=name)]

    def dma_x(self, c):
        buf = (c % 2) * XBUF
        out = []
        out.append(dict(k='salu', t=f"s_add_u32 s41, s40, {c*128}", sow=('x', c)))
        for s in range(4):
            for h in range(2):
                out.append(dict(k='salu', t=f"s_add_u32 m0, s44, {buf + s*1152 + h*1024}", m0=('x', c, s, h)))
                out.append(dict(k='vmem', t=f"buffer_load_dwordx4 v{self.V_XD[h]}, s[24:27], s41 offen offset:{s*896} lds", tag=('x', c), dma=('x', c, s, h), so=('x', c)))
        return out

    def dma_w(self, t):
        slot = self.W0 + (t % self.NW) * WSLOT
        out = []
        out.append(dict(k='salu', t=f"s_add_u32 s46, s42, {t*28672}", sow=('w', t)))
        for i in range(6):
            if i % 4 == 0:
                out.append(dict(k='salu', t=f"s_add_u32 m0, s45, {slot + (i//4)*4096}", m0=('w', t, i // 4)))
            ins = f"buffer_load_dwordx4 v{self.V_WD[i]}, s[28:31], s46 offen offset:{(i%4)*1024} lds"
            if i == 5:
                ins = "s_mov_b64 exec, 0xffff\n" + ins + "\ns_mov_b64 exec, -1"
            out.append(dict(k='vmem', t=ins, tag=('w', t), dma=('w', t, i // 4), so=('w', t)))
        return out

    def rd_w(self, t, n, tap, h, dst):
        slot = t % self.NW
        base = self.V_WA[slot // 2] if n else self.V_WS[slot // 2]
        off = (slot % 2) * WSLOT + (tap * 32 + 16 * h) * 224 + max(n - 1, 0) * 32
        d = dst + 2 * h
        return dict(k='ds', t=f"ds_read_b64_tr_b16 a[{d}:{d+1}], v{base} offset:{off}", w=[('a', d), ('a', d + 1)], need=('w', t))

    def rd_x(self, t, i):
        c, j = t // 2, t % 2
        buf = c % 2
        d = self.xreg(t, i)
        if i == 0:
            a, off = self.V_X0[buf * 2 + j], 0
        elif i == 5:
            a, off = self.V_X5[buf * 2 + j], 0
        else:
            a, off = self.V_XA[j], buf * XBUF + (i - 1) * 2048
        return dict(k='ds', t=f"ds_read_b128 a[{d}:{d+3}], v{a} offset:{off}", w=[('a', d + q) for q in range(4)], need=('x', c))

    def mfma(self, s, n, wreg, xr, first):
        a = self.acc(s, n)
        c = "0" if first else f"v[{a}:{a+3}]"
        return dict(k='mfma', t=f"v_mfma_f32_16x16x32_bf16 v[{a}:{a+3}], a[{wreg}:{wreg+3}], a[{xr}:{xr+3}], {c}",
                    r=[('a', wreg + q) for q in range(4)] + [('a', xr + q) for q in range(4)],
                    w=[('v', a + q) for q in range(4)])

    def epi_tile(self, s, n, idx):
        a = self.acc(s, n)
        T = self.V_ET + (idx % 4) * 4
        o = []
        V = lambda t, r, w, tr=False: dict(k='trans' if tr else 'valu', t=t, r=[('v', x) for x in r], w=[('v', x) for x in w])
        for i in range(4):
            o.append(V(f"v_fma_f32 v{a+i}, v{a+i}, v{self.SC+n*4+i}, v{self.SH+n*4+i}", [a + i, self.SC + n * 4 + i, self.SH + n * 4 + i], [a + i]))
        for i in range(4):
            o.append(V(f"v_exp_f32_e64 v{T+i}, -v{a+i}", [a + i], [T + i], True))
        for i in range(4):
            o.append(V(f"v_fma_f32 v{T+i}, v{T+i}, s50, s50", [T + i], [T + i]))
        for i in range(4):
            o.append(V(f"v_rcp_f32 v{T+i}, v{T+i}", [T + i], [T + i], True))
        for i in range(4):
            o.append(V(f"v_mul_f32 v{T+i}, v{a+i}, v{T+i}", [a + i, T + i], [T + i]))
        if n > 0:
            pk = self.V_PK + s * 4
            half = (n - 1) % 2
        else:
            pk = self.V_PK + (s // 2) * 4
            half = s % 2
        d = pk + 2 * half
        o.append(V(f"v_cvt_pk_bf16_f32 v{d}, v{T}, v{T+1}", [T, T + 1], [d]))
        o.append(V(f"v_cvt_pk_bf16_f32 v{d+1}, v{T+2}, v{T+3}", [T + 2, T + 3], [d + 1]))
        if half == 1:
            x = V(f"v_permlane16_swap_b32 v{pk}, v{pk+2}", [pk, pk + 2], [pk, pk + 2]); x['perm'] = True
            o.append(x)
            x = V(f"v_permlane16_swap_b32 v{pk+1}, v{pk+3}", [pk + 1, pk + 3], [pk + 1, pk + 3]); x['perm'] = True
            o.append(x)
            if n > 0:
                va, off, so, pol = self.V_ST[0], s * 896 + ((n - 1) // 2) * 64, 47, self.store_pol
            else:
                va, off, so, pol = self.V_ST[1], (s - 1) * 896, 48, self.store_pol0
            o.append(dict(k='vmem', t=f"buffer_store_dwordx4 v[{pk}:{pk+3}], v{va}, s[32:35], s{so} offen offset:{off} {pol}".rstrip(),
                          r=[('v', pk + q) for q in range(4)], store=True, tag=('st',)))
        return o

    def consts(self):
        m, v, g, b = self.V_PAR
        T = self.V_T
        V = lambda t, r, w, tr=False: dict(k='trans' if tr else 'valu', t=t, r=[('v', x) for x in r], w=[('v', x) for x in w])
        o = []

        def unpack(src, lo, hi):
            o.append(V(f"v_lshlrev_b32 v{lo}, 16, v{src}", [src], [lo]))
            o.append(V(f"v_and_b32 v{hi}, 0xffff0000, v{src}", [src], [hi]))

        def rnd(lo, hi):
            o.append(V(f"v_cvt_pk_bf16_f32 v{T+10}, v{lo}, v{hi}", [lo, hi], [T + 10]))
            unpack(T + 10, lo, hi)
        o[:] = []
        first = V(f"v_lshlrev_b32 v{T}, 16, v{v}", [v], [T]); first['needvm'] = ('par',)
        o.append(first)
        o.append(V(f"v_and_b32 v{T+1}, 0xffff0000, v{v}", [v], [T + 1]))
        o.append(V(f"v_add_f32 v{T}, 0x3727c5ac, v{T}", [T], [T]))
        o.append(V(f"v_add_f32 v{T+1}, 0x3727c5ac, v{T+1}", [T + 1], [T + 1]))
        rnd(T, T + 1)
        o.append(V(f"v_sqrt_f32 v{T}, v{T}", [T], [T], True))
        o.append(V(f"v_sqrt_f32 v{T+1}, v{T+1}", [T + 1], [T + 1], True))
        unpack(g, T + 2, T + 3)
        rnd(T, T + 1)
        o.append(V(f"v_rcp_f32 v{T}, v{T}", [T], [T], True))
        o.append(V(f"v_rcp_f32 v{T+1}, v{T+1}", [T + 1], [T + 1], True))
        unpack(m, T + 4, T + 5)
        rnd(T, T + 1)
        o.append(V(f"v_mul_f32 v{T}, v{T}, v{T+2}", [T, T + 2], [T]))
        o.append(V(f"v_mul_f32 v{T+1}, v{T+1}, v{T+3}", [T + 1, T + 3], [T + 1]))
        unpack(b, T + 6, T + 7)
        rnd(T, T + 1)
        o.append(V(f"v_fma_f32 v{T+6}, -v{T+4}, v{T}, v{T+6}", [T + 4, T, T + 6], [T + 6]))
        o.append(V(f"v_fma_f32 v{T+7}, -v{T+5}, v{T+1}, v{T+7}", [T + 5, T + 1, T + 7], [T + 7]))
        o.append(V(f"v_mul_f32 v{T}, s50, v{T}", [T], [T]))
        o.append(V(f"v_mul_f32 v{T+1}, s50, v{T+1}", [T + 1], [T + 1]))
        o.append(V(f"v_mul_f32 v{T+6}, s50, v{T+6}", [T + 6], [T + 6]))
        o.append(V(f"v_mul_f32 v{T+7}, s50, v{T+7}", [T + 7], [T + 7]))
        o.append(dict(k='ds', t=f"ds_write_b64 v25, v[{T}:{T+1}]", r=[('v', T), ('v', T + 1)], w=[]))
        o.append(dict(k='ds', t=f"ds_write_b64 v25, v[{T+6}:{T+7}] offset:448", r=[('v', T + 6), ('v', T + 7)], w=[]))
        rd = []
        for n in range(7):
            d = self.SC + n * 4
            ca = self.V_CA if n else self.V_CS
            co = max(n - 1, 0) * 64
            rd.append(dict(k='ds', t=f"ds_read_b128 v[{d}:{d+3}], v{ca} offset:{co}", w=[('v', d + q) for q in range(4)]))
            d = self.SH + n * 4
            rd.append(dict(k='ds', t=f"ds_read_b128 v[{d}:{d+3}], v{ca} offset:{448+co}", w=[('v', d + q) for q in range(4)]))
        return o, rd

    def prologue(self):
        s = ""
        if self.diag:
            s += "s_memtime s[60:61]\ns_memrealtime s[62:63]\n"
        s += f"""s_load_dwordx4 s[4:7], s[0:1], 0
s_load_dwordx8 s[12:19], s[0:1], 16
s_load_dwordx2 s[20:21], s[0:1], 48
"""
        if self.diag:
            s += "s_load_dwordx2 s[22:23], s[0:1], 64\n"
        s += "s_cmp_ge_u32 s2, 256\ns_cbranch_scc1 L_end\n"
        if self.warm:
            s += """s_getpc_b64 s[8:9]
L_pc:
v_lshlrev_b32 v40, 7, v0
v_min_u32 v40, L_end-L_pc, v40
v_mov_b32 v41, s9
v_add_co_u32 v40, vcc, s8, v40
s_nop 1
v_addc_co_u32 v41, vcc, 0, v41, vcc
global_load_dword v42, v[40:41], off
"""
        s += f"""v_lshrrev_b32 v30, 6, v0
v_and_b32 v1, 63, v0
v_readfirstlane_b32 s36, v30
s_and_b32 s38, s2, 7
s_lshr_b32 s39, s2, 3
s_and_b32 s37, s39, 3
s_lshr_b32 s39, s39, 2
s_lshl_b32 s38, s38, 3
s_add_u32 s38, s38, s39
s_mul_i32 s40, s38, 229376
s_mul_i32 s39, s36, 3584
s_add_u32 s40, s40, s39
s_mul_i32 s42, s37, 224
s_add_u32 s43, s40, s42
s_lshl_b32 s44, s36, 13
s_mul_i32 s45, s36, 5376
s_mov_b32 s50, {LOG2E:#x}
v_lshrrev_b32 v31, 3, v1
v_and_b32 v32, 7, v1
v_lshrrev_b32 v33, 1, v31
v_xor_b32 v32, v32, v33
v_xor_b32 v33, 4, v32
v_mul_u32_u24 v31, 14336, v31
v_lshl_add_u32 v{self.V_XD[0]}, v32, 4, v31
v_lshl_add_u32 v{self.V_XD[1]}, v33, 4, v31
v_add_u32 v{self.V_XD[1]}, 114688, v{self.V_XD[1]}
s_mul_i32 s39, s36, 24
"""
        for i in range(6):
            d = self.V_WD[i]
            s += f"""v_add_u32 v31, {64*i}, v1
v_mul_u32_u24 v32, 4682, v31
v_lshrrev_b32 v32, 16, v32
v_mul_u32_u24 v33, 14, v32
v_sub_u32 v31, v31, v33
v_add_u32 v32, s39, v32
v_lshrrev_b32 v33, 5, v32
v_and_b32 v34, 12, v32
v_bfe_u32 v35, v32, 4, 1
v_and_b32 v32, 3, v32
v_lshl_add_u32 v32, v34, 1, v32
v_lshl_add_u32 v32, v35, 2, v32
v_mul_u32_u24 v33, 448, v33
v_add_u32 v32, v32, v33
v_mul_u32_u24 v32, 896, v32
v_lshl_add_u32 v{d}, v31, 4, v32
"""
            if i % 4:
                s += f"v_subrev_u32 v{d}, {(i%4)*1024}, v{d}\n"
        if self.diag:
            s += "s_memtime s[98:99]\n"
        s += f"""s_waitcnt lgkmcnt(0)
s_mov_b32 s24, s4
s_mov_b32 s25, s5
s_mov_b32 s26, {XB}
s_mov_b32 s27, 0x20000
s_mov_b32 s28, s6
s_mov_b32 s29, s7
s_mov_b32 s30, {WB}
s_mov_b32 s31, 0x20000
"""
        return s

    def prologue2(self):
        s = f"""s_mov_b32 s32, s20
s_mov_b32 s33, s21
s_mov_b32 s34, {XB}
s_mov_b32 s35, 0x20000
v_lshrrev_b32 v31, 2, v1
v_and_b32 v32, 3, v1
v_mul_u32_u24 v31, 224, v31
v_lshl_add_u32 v31, v32, 3, v31
s_bitcmp1_b32 s37, 0
s_cselect_b32 s51, 32, 0
s_cselect_b32 s49, 0, 192
s_add_u32 s47, s43, s51
s_add_u32 s48, s43, s49
v_add_u32 v31, {self.W0}, v31
v_add_u32 v{self.V_WA[0]}, s51, v31
v_add_u32 v{self.V_WS[0]}, s49, v31
v_add_u32 v{self.V_WA[1]}, {2*WSLOT}, v{self.V_WA[0]}
v_add_u32 v{self.V_WS[1]}, {2*WSLOT}, v{self.V_WS[0]}
v_and_b32 v31, 15, v1
v_lshrrev_b32 v32, 4, v1
v_lshrrev_b32 v33, 1, v31
v_xor_b32 v33, v33, v32
v_lshlrev_b32 v34, 7, v31
v_lshl_add_u32 v34, v33, 4, v34
v_add_u32 v{self.V_XA[0]}, s44, v34
v_xor_b32 v{self.V_XA[1]}, 64, v{self.V_XA[0]}
v_mov_b32 v35, {self.ZERO}
s_cmp_eq_u32 s36, 0
s_cselect_b64 s[52:53], -1, 0
s_cmp_eq_u32 s36, 3
s_cselect_b64 s[54:55], -1, 0
"""
        for buf in range(2):
            for j in range(2):
                d0 = self.V_X0[buf * 2 + j]; d5 = self.V_X5[buf * 2 + j]
                s += f"v_add_u32 v{d0}, {buf*XBUF - 2048}, v{self.V_XA[j]}\n"
                s += f"v_add_u32 v{d5}, {buf*XBUF + 8192}, v{self.V_XA[j]}\n"
                s += f"v_cndmask_b32 v{d0}, v{d0}, v35, s[52:53]\n"
                s += f"v_cndmask_b32 v{d5}, v{d5}, v35, s[54:55]\n"
        s += f"""v_mov_b32 v36, 0
v_mov_b32 v37, 0
v_mov_b32 v38, 0
v_mov_b32 v39, 0
ds_write_b128 v35, v[36:39]
v_mul_u32_u24 v33, 14336, v31
v_lshrrev_b32 v34, 1, v32
v_lshl_add_u32 v33, v34, 4, v33
v_and_b32 v34, 1, v32
v_lshl_add_u32 v{self.V_ST[0]}, v34, 5, v33
v_mul_u32_u24 v34, 896, v34
v_add_u32 v{self.V_ST[1]}, v34, v33
v_lshlrev_b32 v32, 4, v32
v_add_u32 v32, {self.CONST}, v32
s_lshl_b32 s51, s51, 1
s_lshl_b32 s49, s49, 1
v_add_u32 v{self.V_CA}, s51, v32
v_add_u32 v{self.V_CS}, s49, v32
"""
        return s

    def par_loads(self):
        pre = f"""v_min_u32 v31, 55, v1
v_lshlrev_b32 v25, 3, v31
v_add_u32 v25, {self.CONST}, v25
v_lshlrev_b32 v31, 2, v31
v_add_u32 v31, s42, v31"""
        o = [dict(k='raw', t=pre)]
        for q in range(4):
            o.append(dict(k='vmem', t=f"global_load_dword v{self.V_PAR[q]}, v31, s[{12+2*q}:{13+2*q}]", tag=('par',)))
        return o

    def build(self):
        P, LEAD = self.P, self.LEAD
        T1 = 14 - P
        WR = 128
        mf = []
        gaps = {}

        def put(g, items):
            if not isinstance(items, list):
                items = [items]
            gaps.setdefault(max(g, -1), []).extend(items)
        G1 = 7 * T1
        for t in range(T1):
            for n in range(7):
                G = 7 * t + n
                wb = WR + (G % (LEAD + 1)) * 12
                for s in range(4):
                    for tap in range(3):
                        mf.append(self.mfma(s, n, wb + tap * 4, self.xreg(t, s + tap), t == 0 and tap == 0))
        W2 = WR + (LEAD + 1) * 12
        assert W2 + 2 * 12 * P <= 256
        tile_end = {}
        for n in range(7):
            for s in range(4):
                for t in range(T1, 14):
                    for tap in range(3):
                        wb = W2 + (n % 2) * 12 * P + (t - T1) * 12
                        mf.append(self.mfma(s, n, wb + tap * 4, self.xreg(t, s + tap), False))
                tile_end[(s, n)] = len(mf) - 1
            if P:
                put(len(mf) - 12 * P - 1, self.stamp(f'T{n}'))
        NM = len(mf)
        if P == 0:
            for n in range(7):
                for s in range(4):
                    tile_end[(s, n)] = 84 * 13 + n * 12 + s * 3 + 2
        def bpos(t):
            return 84 * t - 12 * LEAD - 1
        nbar = T1 + (1 if P else 0)
        for t in range(nbar):
            need = []
            if t < T1:
                need = [('w', t), ('x', t // 2)]
            else:
                need = [('w', tt) for tt in range(T1, 14)] + [('x', tt // 2) for tt in range(T1, 14)]
            put(bpos(t), [dict(k='bar', need=need, idx=t)] + self.stamp(f'B{t:02d}'))
        for G in range(G1):
            t, n = divmod(G, 7)
            wb = WR + (G % (LEAD + 1)) * 12
            g0 = 12 * (G - LEAD)
            k = 0
            for tap in range(3):
                for h in range(2):
                    put(g0 + 2 * k - 1 if G >= LEAD else -1, self.rd_w(t, n, tap, h, wb + tap * 4))
                    k += 1
            if G == 0:
                for i in range(6):
                    put(-1, self.rd_x(0, i))
        for t in range(1, T1):
            for i in range(6):
                put(bpos(t) + 1 + 2 * i, self.rd_x(t, i))
        if P:
            g = bpos(T1)
            items = []
            for t in range(T1, 14):
                for tap in range(3):
                    for h in range(2):
                        items.append(self.rd_w(t, 0, tap, h, W2 + (t - T1) * 12 + tap * 4))
                for i in range(3):
                    items.append(self.rd_x(t, i))
            for t in range(T1, 14):
                for i in range(3, 6):
                    items.append(self.rd_x(t, i))
            span = 12 * LEAD + 3 * P
            for k, it in enumerate(items):
                put(g + k * span // len(items), it)
            for n in range(1, 7):
                g0 = 84 * T1 + (n - 1) * 12 * P
                if n == 1:
                    g0 += 3 * P
                span = 84 * T1 + n * 12 * P - 8 - g0
                items = []
                for t in range(T1, 14):
                    for tap in range(3):
                        for h in range(2):
                            items.append(self.rd_w(t, n, tap, h, W2 + (n % 2) * 12 * P + (t - T1) * 12 + tap * 4))
                for k, it in enumerate(items):
                    put(g0 + k * span // len(items), it)
        pro = self.stamp('p0') + self.dma_x(0) + self.stamp('p1') + self.dma_w(0) + self.stamp('p2') + self.dma_w(1) + self.stamp('p3') + self.par_loads() + self.stamp('p4')
        per = {}
        per[0] = self.dma_x(1) + self.dma_w(2)
        per[1] = self.dma_w(3)
        for t in range(2, 14):
            l = []
            if t % 2 == 0 and t // 2 + 1 < 7:
                l += self.dma_x(t // 2 + 1)
            if t + 2 < 14:
                l += self.dma_w(t + 2)
            per[t] = l
        for t, l in per.items():
            if not l:
                continue
            assert t < nbar
            g0 = max(bpos(t) + 14, 0)
            g1 = bpos(t + 1) - 6
            nv = sum(1 for x in l if x['k'] == 'vmem')
            step = (g1 - g0) / nv
            if self.dma_mode == 1:
                step = min(step, 4)
            k = 0
            for it in l:
                g = g0 + int(k * step)
                g = g - (g % 2)
                if it['k'] == 'vmem':
                    put(g, it)
                    k += 1
                else:
                    put(g - 1, it)
        cv, crd = self.consts()
        g0 = bpos(3) + 2
        for k, it in enumerate(cv):
            put(g0 + k, it)
        g0 = bpos(5) + 14
        for k, it in enumerate(crd):
            put(g0 + 4 * k, it)
        tail = []
        order = [(s, n) for n in range(7) for s in range(4)]
        if P:
            g = 0
            for idx, (s, n) in enumerate(order):
                its = self.epi_tile(s, n, idx)
                start = tile_end[(s, n)] + 3
                span = 3 * P
                cost = [8 if x['k'] == 'trans' else 4 for x in its]
                tot = sum(cost)
                acc = 0
                for it, c in zip(its, cost):
                    gg = start + acc * span // tot
                    acc += c
                    if gg >= NM - 1:
                        tail.append(it)
                    else:
                        put(gg, it)
        else:
            for idx, (s, n) in enumerate(order):
                if s == 0:
                    tail += self.stamp(f'T{n}')
                tail += self.epi_tile(s, n, idx)
        if self.order == 0:
            seq = list(pro) + [dict(k='raw', t=self.prologue2())] + self.stamp('pro')
        else:
            seq = self.stamp('p0') + self.dma_x(0) + self.stamp('p1') + [dict(k='raw', t=self.prologue2())] + self.stamp('pro') + self.dma_w(0) + self.stamp('p2') + self.dma_w(1) + self.stamp('p3') + self.par_loads() + self.stamp('p4')
        seq.append(dict(k='raw', t="s_waitcnt lgkmcnt(0)"))
        prio = {'bar': 0, 'smem': 0, 'ds': 1, 'salu': 3, 'valu': 2, 'trans': 2, 'vmem': 2, 'raw': 2}
        for g in range(-1, NM):
            if g >= 0:
                seq.append(mf[g])
            l = gaps.get(g, [])
            if g >= 0:
                l = sorted(l, key=lambda x: prio[x['k']])
            seq += l
        seq += self.stamp('mfend')
        seq += tail
        seq += self.stamp('tail')
        self.gaps = gaps
        return self.finalize(seq)

    def finalize(self, seq):
        out = []
        lds_ops = []
        lds_done = 0
        pend = {}
        vm_ops = [('warm',)] if self.warm else []
        vm_done = 0
        landed = set()
        nm = 0
        hist = []

        def emit(it):
            out.append(it)
            n = len([l for l in it['t'].split('\n') if l.strip() and not l.strip().startswith(';')])
            for _ in range(n - 1):
                hist.append(dict(k='x'))
            hist.append(it)

        def dist_since(pred):
            d = 0
            for h in reversed(hist):
                if pred(h):
                    return d
                d += h.get('states', 1)
                if d > 24:
                    break
            return 99
        nwait = 0
        cur_m0 = None
        cur_so = {}
        for it in seq:
            k = it['k']
            if k == 'smem' and it['t'] == 'STAMP':
                kk = self.nstamp
                self.nstamp += 1
                assert kk < 17
                it['t'] = f"s_memtime s[{64+2*kk}:{65+2*kk}]"
                self.stampnames.append(it['name'])
            if it.get('store') and self.nostore:
                continue
            if k == 'bar':
                last = -1
                for tg in it['need']:
                    idxs = [i for i, x in enumerate(vm_ops) if x == tg]
                    assert idxs, ("barrier needs un-issued group", tg, it['idx'])
                    last = max(last, idxs[-1])
                if last + 1 > vm_done:
                    N = len(vm_ops) - (last + 1)
                    assert N <= 63
                    emit(dict(k='wait', t=f"s_waitcnt vmcnt({N})"))
                    vm_done = last + 1
                emit(dict(k='salu', t="s_barrier"))
                full = {}
                for i, x in enumerate(vm_ops):
                    full[x] = full.get(x, True) and i < vm_done
                landed = {x for x, f in full.items() if f}
                continue
            if it.get('m0'):
                cur_m0 = it['m0']
            if it.get('sow'):
                cur_so[it['sow'][0]] = it['sow']
            if it.get('dma'):
                assert cur_m0 == it['dma'], (cur_m0, it)
                assert cur_so[it['so'][0]] == it['so']
            if 'need' in it:
                assert it['need'] in landed, ("read before landed", it)
            if 'needvm' in it:
                idxs = [i for i, x in enumerate(vm_ops) if x == it['needvm']]
                assert idxs[-1] < vm_done
            need = -1
            for r in it.get('r', []) + (it.get('w', []) if k != 'ds' else []):
                if r in pend and pend[r] >= lds_done:
                    need = max(need, pend[r])
            if need >= 0:
                j = need
                while j + 1 < len(lds_ops) and lds_ops[j + 1] <= nm - 7:
                    j += 1
                N = min(len(lds_ops) - (j + 1), 15)
                emit(dict(k='wait', t=f"s_waitcnt lgkmcnt({N})"))
                nwait += 1
                lds_done = len(lds_ops) - N
            rs = set(it.get('r', [])); ws = set(it.get('w', []))
            pad = 0
            if k in ('valu', 'trans', 'vmem', 'ds'):
                d = dist_since(lambda h: h['k'] == 'mfma' and (set(h['w']) & (rs | ws)))
                pad = max(pad, 8 - d)
            if k == 'valu':
                d = dist_since(lambda h: h['k'] == 'trans' and (set(h['w']) & rs))
                pad = max(pad, 1 - d)
            if it.get('perm'):
                d = dist_since(lambda h: h['k'] in ('valu', 'trans') and (set(h['w']) & rs))
                pad = max(pad, 2 - d)
            if k in ('valu', 'trans'):
                d = dist_since(lambda h: h.get('store') and (set(h['r']) & ws))
                pad = max(pad, 2 - d)
            if it.get('dma') and not it['t'].startswith('s_mov_b64 exec'):
                d = dist_since(lambda h: h.get('m0'))
                pad = max(pad, 1 - d)
            if pad > 0:
                emit(dict(k='nop', t=f"s_nop {pad-1}", states=pad))
            emit(it)
            if k == 'ds':
                for r in it.get('w', []):
                    pend[r] = len(lds_ops)
                lds_ops.append(nm)
            if k == 'raw' and 'lgkmcnt(0)' in it['t']:
                lds_done = len(lds_ops)
            if k == 'vmem':
                vm_ops.append(it['tag'])
            if k == 'mfma':
                nm += 1
        self.nwait = nwait
        return out

    def text(self):
        seq = self.build()
        s = header(256, 256, self.LDS)
        s += self.prologue()
        s += '\n'.join(x['t'].rstrip('\n') for x in seq) + '\n'
        if self.diag:
            s += "s_waitcnt vmcnt(0)\ns_memtime s[56:57]\ns_memrealtime s[58:59]\ns_waitcnt lgkmcnt(0)\n"
            s += "v_mov_b32 v2, 0\nv_mov_b32 v3, 0\n"
            for k in range(self.nstamp):
                s += f"s_sub_u32 s{64+2*k}, s{64+2*k}, s60\nv_writelane_b32 v2, s{64+2*k}, {k}\n"
            s += f"s_sub_u32 s56, s56, s60\nv_writelane_b32 v2, s56, {self.nstamp}\ns_sub_u32 s98, s98, s60\nv_writelane_b32 v3, s98, 61\nv_writelane_b32 v3, s58, 62\nv_writelane_b32 v3, s62, 63\n"
            s += """s_mov_b32 s24, s22
s_mov_b32 s25, s23
s_mov_b32 s26, 0x1000000
s_mov_b32 s27, 0x20000
v_lshlrev_b32 v4, 3, v0
s_lshl_b32 s3, s2, 11
buffer_store_dwordx2 v[2:3], v4, s[24:27], s3 offen
"""
        s += "L_end:\ns_endpgm\n"
        s += footer(512, 102, 256)
        return s


if __name__ == '__main__':
    import argparse
    ap = argparse.ArgumentParser()
    ap.add_argument('out')
    ap.add_argument('-P', type=int, default=2)
    ap.add_argument('--lead', type=int, default=2)
    ap.add_argument('--diag', action='store_true')
    ap.add_argument('--pol', default='')
    ap.add_argument('--dma', type=int, default=0)
    ap.add_argument('--sel', default='')
    ap.add_argument('--nostore', action='store_true')
    ap.add_argument('--pol0', default='')
    ap.add_argument('--warm', type=int, default=1)
    ap.add_argument('--order', type=int, default=1)
    a = ap.parse_args()
    g = Gen(P=a.P, LEAD=a.lead, diag=a.diag, store_pol=a.pol, dma_mode=a.dma, stampsel=a.sel.split(',') if a.sel else None, nostore=a.nostore, store_pol0=a.pol0, warm=a.warm, order=a.order)
    t = g.text()
    open(a.out, 'w').write(t)
    print("lines", t.count('\n'), "lgkm waits", g.nwait, "stamps", g.stampnames, "lds", g.LDS)
```

```python
import sys
sys.path.insert(0, 'tools')
from common import *

NLOG2E = 0xbfb8aa3b
WSLOT = 12288
XBUF = 32768
XS = 36


def V(t, r, w, tr=False, **kw):
    d = dict(k='trans' if tr else 'valu', t=t, r=[('v', x) for x in r], w=[('v', x) for x in w])
    d.update(kw)
    return d


def rn(r, n=4, o=0):
    return f"{r[0]}[{r[1]+o}:{r[1]+o+n-1}]"


def rl(r, n=4, o=0):
    return [(r[0], r[1] + o + q) for q in range(n)]


class Gen:
    def __init__(self, **o):
        d = dict(L=6, P=5, PA=2, LEAD=20, XL=6, NS=6, NX=3, NW=5, diag=False, sel=None, nostore=False, pol='sc0 sc1', xpol='nt',
                 wpol='', pfpol='', xsp=4, wsp=4, wahead=3, xahead=4, xsched=None, twice=0, parbar=3,
                 pro='p0,x00,x01,w0,S,w1,w2', blead=(20, 28, 20, 28), dmaeven=1, dmaeven_until=21, pfmode=0, first=3, nfirst=12,
                 reread=None, order=None, xrot=1, safe=90, NT=8, dspair=1, stsp=14, tast=260, tasb=70, ep=None, xlag=7, rlag=9, stdelay=1, skip='', early=1, kz=16, xfirst={}, cov=3, spin=None, rot=0, xgrp=(2, 2, 1, 1))
        d.update(o)
        self.__dict__.update(d)
        self.W0 = self.NX * XBUF
        self.CONST = self.W0 + self.NW * WSLOT
        self.LDS = self.CONST + 1024
        self.STG = 0
        assert self.LDS <= 163840
        self.q_early = 'q' in self.pro.split(',')

    V_DUM = 2
    V_XD = (6, 7, 8, 9)
    V_WD = {'A': (10, 11, 12), 'B': (13, 14, 15)}
    V_RA = 16
    V_RB = 22
    V_XA = (34, 35, 36, 37)
    V_XH = (38, 39, 40, 41)
    V_ST = {'A': 42, 'F': 43, 'S': 44}
    V_XW, V_XR = 45, 46
    V_CA = {'A': 47, 'B': 48}
    V_CW, V_PF = 49, 50
    V_C = 52
    V_PAR = (52, 53, 54, 55)
    V_T = 56
    V_ET = 84
    V_FREE = list(range(100, 144, 4))
    V_ACC = 144

    def srows(self, n):
        return list(range(8)) if n == 0 else list(range(4 * self.par, 4 * self.par + 4))

    def rows(self, g, n):
        return list(range(8)) if g == 'A' else self.srows(n)

    def acc(self, g, n, s):
        if g == 'A':
            return self.V_ACC + (s * 2 + n) * 4
        return self.V_ACC + 64 + (s if n == 0 else 8 + s % 4) * 4

    def stamp(self, name=''):
        if self.spin == name:
            return [dict(k='raw', t="s_memrealtime s[62:63]")]
        if not self.diag or (self.sel and not any(name.startswith(p) for p in self.sel)):
            return []
        return [dict(k='smem', t="STAMP", name=name)]

    def xb(self, c):
        return (c + self.xrot) % self.NX

    def sset(self, reg, base, val, **kw):
        old = self.sval.get(reg)
        self.sval[reg] = (base, val)
        if old and old[0] == base and -32768 <= val - old[1] < 32768:
            if val == old[1]:
                return dict(k='none', t="", **kw)
            return dict(k='salu', t=f"s_addk_i32 {reg}, {val - old[1]}", **kw)
        if base is None:
            if 0 <= val < 32768:
                return dict(k='salu', t=f"s_movk_i32 {reg}, {val}", **kw)
            return dict(k='salu8', t=f"s_mov_b32 {reg}, {val}", **kw)
        if val == 0:
            return dict(k='salu', t=f"s_mov_b32 {reg}, {base}", **kw)
        return dict(k='salu8', t=f"s_add_u32 {reg}, {base}, {val}", **kw)

    def dma_x(self, c, halves=(0, 1)):
        buf = self.xb(c) * XBUF
        out = []
        for hf in halves:
            so = ('s48', 's49')[hf]
            if self.rot:
                out.append(dict(k='salu', t=f"s_add_u32 {so}, {('s8', 's9')[hf]}, s{90+c}", sow=('x', c, hf)))
            else:
                out.append(self.sset(so, ('s8', 's9')[hf], c * 128, sow=('x', c, hf)))
            if self.cov & 1:
                out.append(self.sset('m0', ('s20', 's100')[hf], buf, m0=('x', c, hf)))
            else:
                out.append(self.sset('m0', 's20', buf + hf * 4096, m0=('x', c, hf)))
            for k in ((0, 2, 1, 3) if self.cov & 2 else range(4)):
                out.append(dict(k='vmem', t=f"buffer_load_dwordx4 v{self.V_XD[k]}, s[24:27], {so} offen offset:{k*1024} {self.xpol} lds",
                                tag=('x', c), dma=('x', c, hf), so=('x', c, hf), region=(buf, buf + XBUF)))
        return out

    def dma_w(self, g, t):
        slot = self.wslot[(g, t)]
        if self.rot:
            out = []
            if self.sval.get('s53', (None,))[0] != ('c', t // 2):
                out.append(dict(k='salu8', t=f"s_mul_i32 s53, s{90+t//2}, 448", sow=('w', None)))
                self.sval['s53'] = (('c', t // 2), 0)
            out.append(self.sset('s53', ('c', t // 2), (t % 2) * 28672, sow=('w', g, t)))
        else:
            out = [self.sset('s53', None, t * 28672, sow=('w', g, t))]
        out.append(self.sset('m0', 's21', slot, m0=('w', g, t)))
        for tap in range(3):
            out.append(dict(k='vmem', t=f"buffer_load_dwordx4 v{self.V_WD[g][tap]}, s[28:31], s53 offen offset:{tap*1024} {self.wpol} lds",
                            tag=('w', g, t), dma=('w', g, t), so=('w', g, t), region=(slot, slot + WSLOT)))
        return out

    def pf_w(self, c):
        return [dict(k='salu8', t=f"s_mul_i32 s55, s{90+c}, 448", sow=('p', c)) if self.rot else self.sset('s55', None, c * 57344, sow=('p', c)),
                dict(k='vmem', t=f"buffer_load_dword v{self.V_DUM + c % 2}, v{self.V_PF}, s[28:31], s55 offen {self.pfpol}", tag=('pf', c), so=('p', c))]

    def rd_w(self, g, t, n, tap, h, dst):
        slot = self.wslot[(g, t)]
        win = 0 if slot >= self.W0 else 1
        off = slot - self.W0 + win * 65536 + h * 512
        assert 0 <= off < 65536 and (g == 'B' or win == 0)
        base = (self.V_RA if g == 'A' else self.V_RB + win * 6) + n * 3 + tap
        return dict(k='ds', t=f"ds_read_b64_tr_b16 {rn(dst, 2, 2*h)}, v{base} offset:{off}", w=rl(dst, 2, 2 * h),
                    need=('w', g, t), region=(slot, slot + WSLOT))

    def rd_x(self, t, i, d):
        c, j = t // 2, t % 2
        buf = self.xb(c)
        a = (self.V_XA if i < 8 else self.V_XH)[(buf // 2) * 2 + j]
        off = (buf % 2) * XBUF + (i * 2048 if i < 8 else 0)
        return dict(k='ds', t=f"ds_read_b128 {rn(d)}, v{a} offset:{off}", w=rl(d), need=('x', c), region=(buf * XBUF, (buf + 1) * XBUF))

    def mfma(self, g, n, s, wreg, xr, first):
        a = self.acc(g, n, s)
        c = "0" if first else f"v[{a}:{a+3}]"
        return dict(k='mfma', t=f"v_mfma_f32_16x16x32_bf16 v[{a}:{a+3}], {rn(wreg)}, {rn(xr)}, {c}",
                    r=rl(wreg) + rl(xr), w=[('v', a + q) for q in range(4)], ops=(wreg, xr))

    def const_reads(self):
        o = []
        for q, (g, n) in enumerate((('A', 0), ('A', 1), ('B', 0), ('B', 1))):
            d = self.V_C + q * 8
            off = n * (64 if g == 'A' else 128)
            o.append(dict(k='ds', t=f"ds_read_b128 v[{d}:{d+3}], v{self.V_CA[g]} offset:{off}", w=rl(('v', d))))
            o.append(dict(k='ds', t=f"ds_read_b128 v[{d+4}:{d+7}], v{self.V_CA[g]} offset:{512+off}", w=rl(('v', d + 4))))
        return o

    def epi_pair(self, g, n, s, hh, j):
        a = self.acc(g, n, s) + 2 * hh
        T = self.V_ET + (j % self.NT) * 2
        sc = self.V_C + (n + (2 if g == 'B' else 0)) * 8 + 2 * hh
        sh = sc + 4
        d = self.acc(g, 0, s) + 2 * n + hh if g == 'A' else self.acc(g, n, s) + hh
        return [[V(f"v_pk_fma_f32 v[{a}:{a+1}], v[{a}:{a+1}], v[{sc}:{sc+1}], v[{sh}:{sh+1}]", [a, a + 1, sc, sc + 1, sh, sh + 1], [a, a + 1], pk=True,
                   alt=[V(f"v_fma_f32 v{a+i}, v{a+i}, v{sc+i}, v{sh+i}", [a + i, sc + i, sh + i], [a + i]) for i in range(2)])],
                [V(f"v_exp_f32 v{T+i}, v{a+i}", [a + i], [T + i], True) for i in range(2)],
                [V(f"v_pk_fma_f32 v[{T}:{T+1}], v[{T}:{T+1}], s[50:51], s[50:51]", [T, T + 1], [T, T + 1], pk=True,
                   alt=[V(f"v_fma_f32 v{T+i}, v{T+i}, s50, s50", [T + i], [T + i]) for i in range(2)])],
                [V(f"v_rcp_f32 v{T+i}, v{T+i}", [T + i], [T + i], True) for i in range(2)],
                [V(f"v_pk_mul_f32 v[{T}:{T+1}], v[{a}:{a+1}], v[{T}:{T+1}]", [a, a + 1, T, T + 1], [T, T + 1], pk=True,
                   alt=[V(f"v_mul_f32 v{T+i}, v{a+i}, v{T+i}", [a + i, T + i], [T + i]) for i in range(2)])],
                [V(f"v_cvt_pk_bf16_f32 v{d}, v{T}, v{T+1}", [T, T + 1], [d])]]

    def store(self, d, va, so):
        return dict(k='vmem', t=f"buffer_store_dwordx4 v[{d}:{d+3}], v{va}, s[32:35], s{so} offen {self.pol}".rstrip(),
                    r=rl(('v', d)), store=True, tag=('st',))

    def epi_schedule(self, gaps, tiles, tile_end, NM, ep, commit):
        bmin, ntrmax, fmax = ep
        jobs = []
        posts = {}
        for g, n, s in tiles:
            key = ('A', s) if g == 'A' else ('W', n, s)
            for hh in range(2):
                jobs.append(dict(st=self.epi_pair(g, n, s, hh, len(jobs)), i=0, rdy=tile_end[(g, n, s)] + 3, key=key, j=len(jobs)))
            if key in posts:
                continue
            if g == 'A':
                pk = self.acc('A', 0, s)
                posts[key] = dict(left=4, rdy=None, nxt=None, st=[
                    ('perm', V(f"v_permlane16_swap_b32 v{pk}, v{pk+2}", [pk, pk + 2], [pk, pk + 2], perm=True), 0),
                    ('perm', V(f"v_permlane16_swap_b32 v{pk+1}, v{pk+3}", [pk + 1, pk + 3], [pk + 1, pk + 3], perm=True), 1),
                    ('store', self.store(pk, self.V_ST['A'], 40 + s), 0)])
            else:
                a = self.acc(g, n, s)
                item = s if n == 0 else 8 + s % 4
                rg = (self.STG, self.STG + 24576)
                pi = item // 2
                grp = [q for q, z in enumerate(self.xgrp) for _ in range(z)][pi]
                posts[key] = dict(left=2, rdy=None, nxt=[('G', grp)], st=[
                    ('dsw', dict(k='ds', t=f"ds_write_b64 v{self.V_XW}, v[{a}:{a+1}] offset:{item*1024}", r=rl(('v', a), 2), w=[], wregion=rg, xw=grp), self.xlag)])
                if s % 2 == 0:
                    if ('G', grp) not in posts:
                        posts[('G', grp)] = dict(left=2 * self.xgrp[grp], rdy=None, nxt=[], st=[('bar', dict(k='bar', need=[], idx=('G', grp), xw=grp), 0)])
                    posts[('G', grp)]['nxt'].append(('X', pi))
                    posts[('X', pi)] = dict(left=1, rdy=None, nxt=None, st=[
                        ('dsr', dict(k='ds', t=f"ds_read_b128 v[{a}:{a+3}], v{self.V_XR} offset:{item*1024}", w=rl(('v', a)), xr=grp), self.rlag),
                        ('storeb', self.store(a, self.V_ST['F' if n == 0 else 'S'], 56 + s // 2), 0)])
        extra = 0
        tail = []
        g = min(jb['rdy'] for jb in jobs)
        laststore = -99
        ta_free = 0
        NT = self.NT

        def ready(jb, g):
            st, j = jb['i'], jb['j']
            if st >= 6 or jb['rdy'] > g:
                return False
            if st == 0 and j > 0 and jobs[j - 1]['i'] == 0:
                return False
            if st == 1 and j >= NT and not (jobs[j - NT]['i'] >= 6 and jobs[j - NT]['rdy'] <= g):
                return False
            if st == 0 and j >= NT + 2 and jobs[j - NT - 2]['i'] < 6:
                return False
            if st == 5 and any(jobs[q]['i'] < 5 for q in range(max(0, j - 3), j)):
                return False
            return True

        def arrive(key, g):
            S = posts[key]
            S['left'] -= 1
            S['t'] = max(S.get('t', 0), g)
            if S['left'] == 0:
                S['rdy'] = S['t']

        def take(jb, g, out):
            out.append(jb['st'][jb['i']].pop(0))
            if not jb['st'][jb['i']]:
                jb['i'] += 1
                jb['rdy'] = g + 1
                if jb['i'] == 6:
                    arrive(jb['key'], g + 1)

        def ptake(S, g, out, intail):
            kind, it, lag = S['st'].pop(0)
            out.append(it)
            lag = min(lag, 1) if intail else lag
            S['rdy'] = g + lag
            if not S['st'] and S['nxt']:
                for y in S['nxt']:
                    arrive(y, g + lag)

        def pready(kinds, g):
            return [S for S in posts.values() if S['st'] and S['st'][0][0] in kinds and S['rdy'] is not None and S['rdy'] <= g]
        lo = 0
        while any(S['st'] for S in posts.values()):
            intail = g >= NM - 1
            G = gaps[g] if not intail else dict(mem=[], v=[], used=0, excl=False)
            if G['excl']:
                g += 1
                continue
            while lo < len(jobs) and jobs[lo]['i'] >= 6:
                lo += 1
            act = jobs[lo:lo + NT + 3]
            used = G['used']
            pre, mem, v = [], [], []
            free3 = 0
            for S in pready(('bar',), g)[:1]:
                ptake(S, g, pre, intail)
                extra += 45
            if used <= 1:
                for S in pready(('dsr',), g)[:1]:
                    ptake(S, g, mem, intail); used += 1
            if used == 0:
                for S in pready(('store', 'storeb'), g)[:1]:
                    if intail or (g - laststore >= self.stsp and g > self.stmin):
                        ta_free = max(ta_free, 16 * min(g, NM) + extra) + (self.tast if S['st'][0][0] == 'store' else self.tasb)
                        ptake(S, g, mem, intail)
                        laststore = g
                        extra += 14
                        free3 = 1
            if used == 0 and not free3:
                for S in pready(('dsw',), g)[:1]:
                    ptake(S, g, mem, intail); used += 3
            cap = 3 if free3 else 2

            def cands(st):
                return [jb for jb in act if jb['i'] == st and ready(jb, g)]

            def filler(limit, allow_over, scal=False):
                nonlocal used
                while used < limit:
                    pm = pready(('perm',), g)
                    tr = cands(3) + cands(1)
                    cv = cands(5)
                    room = limit - used
                    if room >= 2 and pm:
                        ptake(pm[0], g, v, intail); used += 2
                    elif room >= 2 and tr and len(cv) < 3:
                        take(tr[0], g, v); used += 2
                    elif cv:
                        take(cv[0], g, v); used += 1
                    elif scal and (cands(2) + cands(0) + cands(4)):
                        l = cands(2) + cands(0) + cands(4)
                        jb = ([x for x in l if not x['st'][x['i']][0].get('pk')] + l)[0]
                        if jb['st'][jb['i']][0].get('pk'):
                            jb['st'][jb['i']] = list(jb['st'][jb['i']][0]['alt'])
                        take(jb, g, v); used += 1
                    elif allow_over and tr:
                        take(tr[0], g, v); used += 2
                    else:
                        break
            pk = cands(4) + cands(2) + [jb for jb in act if jb['i'] == 0 and jb['rdy'] <= g and jb['j'] < NT + 2 + lo][:fmax]
            ntr = sum(len(jb['st'][jb['i']]) for jb in cands(1) + cands(3))
            if intail:
                filler(99, True)
                for jb in pk:
                    if ready(jb, g):
                        take(jb, g, v); used += 1
                tail += pre + mem + v
                extra += 4 * used + (60 if pre or any('xr' in x for x in mem) else 0)
            else:
                if not free3 and len(pk) >= bmin and ntr <= ntrmax and (2 * ntr + used + len(cands(5)) >= 4 or len(pk) >= bmin + 3):
                    filler(5, True)
                    used = max(used, 5)
                    for jb in pk:
                        if ready(jb, g):
                            take(jb, g, v); used += 1
                else:
                    filler(cap, False, True)
                extra += 4 * max(0, used - cap)
                if commit:
                    G['pre'] += pre
                    G['mem'] += mem
                    G['v'] += v
                    G['used'] = used - free3
            g += 1
            assert g < NM + 300
        return extra, ta_free - 16 * NM, tail

    def consts(self):
        m, v, g, b = self.V_PAR
        T = self.V_T
        o = []

        def unpack(src, lo, hi):
            o.append(V(f"v_lshlrev_b32 v{lo}, 16, v{src}", [src], [lo]))
            o.append(V(f"v_and_b32 v{hi}, 0xffff0000, v{src}", [src], [hi]))

        def rnd(lo, hi):
            o.append(V(f"v_cvt_pk_bf16_f32 v{T+10}, v{lo}, v{hi}", [lo, hi], [T + 10]))
            unpack(T + 10, lo, hi)
        unpack(v, T, T + 1)
        o[0]['needvm'] = ('par',)
        o.append(V(f"v_add_f32 v{T}, 0x3727c5ac, v{T}", [T], [T]))
        o.append(V(f"v_add_f32 v{T+1}, 0x3727c5ac, v{T+1}", [T + 1], [T + 1]))
        rnd(T, T + 1)
        o.append(V(f"v_sqrt_f32 v{T}, v{T}", [T], [T], True))
        o.append(V(f"v_sqrt_f32 v{T+1}, v{T+1}", [T + 1], [T + 1], True))
        unpack(g, T + 2, T + 3)
        rnd(T, T + 1)
        o.append(V(f"v_rcp_f32 v{T}, v{T}", [T], [T], True))
        o.append(V(f"v_rcp_f32 v{T+1}, v{T+1}", [T + 1], [T + 1], True))
        unpack(m, T + 4, T + 5)
        rnd(T, T + 1)
        o.append(V(f"v_mul_f32 v{T}, v{T}, v{T+2}", [T, T + 2], [T]))
        o.append(V(f"v_mul_f32 v{T+1}, v{T+1}, v{T+3}", [T + 1, T + 3], [T + 1]))
        unpack(b, T + 6, T + 7)
        rnd(T, T + 1)
        o.append(V(f"v_fma_f32 v{T+6}, -v{T+4}, v{T}, v{T+6}", [T + 4, T, T + 6], [T + 6]))
        o.append(V(f"v_fma_f32 v{T+7}, -v{T+5}, v{T+1}, v{T+7}", [T + 5, T + 1, T + 7], [T + 7]))
        o.append(V(f"v_mul_f32 v{T}, s50, v{T}", [T], [T]))
        o.append(V(f"v_mul_f32 v{T+1}, s50, v{T+1}", [T + 1], [T + 1]))
        o.append(V(f"v_mul_f32 v{T+6}, s50, v{T+6}", [T + 6], [T + 6]))
        o.append(V(f"v_mul_f32 v{T+7}, s50, v{T+7}", [T + 7], [T + 7]))
        o.append(dict(k='ds', t=f"ds_write_b64 v{self.V_CW}, v[{T}:{T+1}]", r=[('v', T), ('v', T + 1)], w=[]))
        o.append(dict(k='ds', t=f"ds_write_b64 v{self.V_CW}, v[{T+6}:{T+7}] offset:512", r=[('v', T + 6), ('v', T + 7)], w=[]))
        return o

    def prologue(self):
        T = self.V_T
        XD = self.V_XD
        s = ""
        if self.spin == 'start':
            s += "s_memrealtime s[62:63]\n"
        if self.diag:
            s += "s_memtime s[60:61]\ns_memrealtime s[62:63]\n"
        s += """s_load_dwordx4 s[24:27], s[0:1], 0
s_load_dwordx8 s[12:19], s[0:1], 16
s_load_dwordx2 s[32:33], s[0:1], 48
"""
        if self.diag:
            s += "s_load_dwordx2 s[22:23], s[0:1], 64\n"
        s += f"""s_cmp_ge_u32 s2, 256
s_cbranch_scc1 L_exit
v_lshrrev_b32 v{T+2}, 6, v0
v_and_b32 v1, 63, v0
s_lshr_b32 s39, s2, 3
; every workgroup touches 16 lines of the code (32 workgroups per XCD cover 64 KiB) so that fetches hit L2
s_getpc_b64 s[8:9]
L_pc:
s_lshl_b32 s3, s39, 11
v_lshrrev_b32 v{T}, 4, v0
v_lshl_add_u32 v{T}, v{T}, 7, s3
v_min_u32 v{T}, L_last-L_pc, v{T}
v_mov_b32 v{T+1}, s9
v_add_co_u32 v{T}, vcc, s8, v{T}
v_readfirstlane_b32 s36, v{T+2}
s_and_b32 s38, s2, 7
v_addc_co_u32 v{T+1}, vcc, 0, v{T+1}, vcc
global_load_dword v{self.V_DUM+2}, v[{T}:{T+1}], off
s_and_b32 s37, s39, 3
s_lshr_b32 s3, s39, 2
s_lshl_b32 s38, s38, 3
s_add_u32 s38, s38, s3
s_mul_i32 s40, s38, 229376
s_mul_i32 s3, s36, 3584
s_lshl_b32 s20, s36, 13
s_mul_i32 s21, s36, 3072
s_sub_u32 s4, {23*896}, s3
s_movk_i32 s52, 896
s_bitcmp1_b32 s36, 1
s_cselect_b32 s3, s4, s3
s_cselect_b32 s52, -896, s52
s_add_u32 s8, s40, s3
s_add_u32 s9, s8, s52
s_add_u32 s9, s9, s52
s_sub_u32 s5, s52, 2048
{self.cov1()}; x DMA voffsets (descriptor base is biased by -4096)
v_lshrrev_b32 v{T+3}, 3, v1
v_and_b32 v{T+4}, 7, v1
v_lshrrev_b32 v{T+5}, 4, v1
v_xor_b32 v{T+6}, v{T+4}, v{T+5}
v_mul_u32_u24 v{T+7}, 14336, v{T+3}
v_lshl_add_u32 v{T+7}, v{T+6}, 4, v{T+7}
{self.cov2()}v_add_u32 v{XD[2]}, s5, v{XD[0]}
v_add_u32 v{XD[3]}, s5, v{XD[1]}
s_mul_i32 s3, s39, 42
s_mul_i32 s4, s36, 11
s_add_u32 s3, s3, s4
v_min_u32 v{T+8}, 10, v1
v_add_u32 v{T+8}, s3, v{T+8}
v_min_u32 v{T+8}, 1343, v{T+8}
v_mul_u32_u24 v{T+9}, 2341, v{T+8}
v_lshrrev_b32 v{T+9}, 20, v{T+9}
v_mul_u32_u24 v{T+9}, {401408-57344}, v{T+9}
v_lshl_add_u32 v{self.V_PF}, v{T+8}, 7, v{T+9}
"""
        if self.rot:
            s += f"s_and_b32 s90, s2, 7\ns_cmp_eq_u32 s90, 7\ns_cselect_b32 s90, 3, s90\ns_lshl_b32 s90, s90, 7\n"
        if self.q_early:
            s += self.colsetup() + self.par_addr()
        if self.pro[0] == 'w':
            s += self.prologue_w()
        if self.diag:
            s += "s_memtime s[98:99]\n"
        s += f"""s_mov_b32 s30, {WB}
s_mov_b32 s31, 0x20000
s_waitcnt lgkmcnt(0)
s_mov_b32 s28, s26
s_mov_b32 s29, s27
s_sub_u32 s24, s24, 4096
s_subb_u32 s25, s25, 0
s_mov_b32 s26, {XB+4096}
s_mov_b32 s27, 0x20000
"""
        return s

    def cov1(self):
        if not self.cov & 1:
            return ""
        return """s_add_u32 s100, s20, 4096
s_bitcmp1_b32 s37, 0
s_cselect_b32 s3, s9, s8
s_cselect_b32 s9, s8, s9
s_cselect_b32 s4, s100, s20
s_cselect_b32 s100, s20, s100
s_mov_b32 s8, s3
s_mov_b32 s20, s4
"""

    def cov2(self):
        T, XD = self.V_T, self.V_XD
        if not self.cov & 2:
            return f"""v_add_u32 v{XD[0]}, 4096, v{T+7}
v_xor_b32 v{XD[1]}, 64, v{XD[0]}
v_add_u32 v{XD[1]}, {114688-1024}, v{XD[1]}
"""
        return f"""s_bitcmp1_b32 s37, 1
s_cselect_b32 s3, 114688, 0
s_sub_u32 s4, {114688+3072}, s3
s_addk_i32 s3, 4096
v_xor_b32 v{XD[1]}, 64, v{T+7}
v_add_u32 v{XD[0]}, s3, v{T+7}
v_add_u32 v{XD[1]}, s4, v{XD[1]}
"""

    def cov3(self):
        T = self.V_T
        if not self.cov & 2:
            return ""
        return f"""s_bitcmp1_b32 s37, 1
s_cselect_b32 s5, 1088, 0
v_xor_b32 v{T+5}, s5, v{T+5}
"""

    def colsetup(self):
        return """s_lshl_b32 s6, s37, 8
s_lshr_b32 s4, s37, 1
s_mul_i32 s7, s4, 448
s_add_u32 s7, s7, 192
s_mul_i32 s4, s4, 192
s_sub_u32 s10, s6, s4
s_add_u32 s10, s10, 128
"""

    def prologue_w(self):
        T = self.V_T
        WA, WBr = self.V_WD['A'], self.V_WD['B']
        return ('' if self.q_early else self.colsetup()) + f"""s_lshl_b32 s3, s36, 2
s_and_b32 s3, s3, 4
v_and_b32 v{T+5}, 1, v{T+5}
v_lshl_add_u32 v{T+5}, v{T+5}, 1, s3
v_xor_b32 v{T+4}, v{T+4}, v{T+5}
s_mul_i32 s3, s36, 7168
v_mul_u32_u24 v{T+3}, 896, v{T+3}
v_lshl_add_u32 v{T+3}, v{T+4}, 4, v{T+3}
v_add_u32 v{T+3}, s3, v{T+3}
v_add_u32 v{WA[0]}, s6, v{T+3}
v_add_u32 v{WA[1]}, {401408-1024}, v{WA[0]}
v_add_u32 v{WA[2]}, {802816-2048}, v{WA[0]}
s_sub_u32 s11, s7, 64
v_mov_b32 v{T+5}, s10
v_mov_b32 v{T+6}, s11
v_cmp_gt_u32 vcc, 4, v{T+4}
s_mov_b32 s50, {NLOG2E:#x}
s_mov_b32 s51, s50
s_mov_b32 s34, {XB}
s_mov_b32 s35, 0x20000
v_cndmask_b32 v{T+5}, v{T+6}, v{T+5}, vcc
v_add_u32 v{WBr[0]}, v{T+5}, v{T+3}
v_add_u32 v{WBr[1]}, {401408-1024}, v{WBr[0]}
v_add_u32 v{WBr[2]}, {802816-2048}, v{WBr[0]}
"""

    def prologue2(self):
        T = self.V_T
        RA, RB, XA, XH = self.V_RA, self.V_RB, self.V_XA, self.V_XH
        s = f"""; s3 = nu, s4 = mu, s5 = tap step (+-1024)
s_and_b32 s3, s36, 1
s_lshr_b32 s4, s36, 1
s_lshl_b32 s5, s4, 11
s_sub_u32 s5, 1024, s5
v_lshrrev_b32 v{T}, 4, v1
v_bfe_u32 v{T+1}, v1, 2, 2
v_mul_u32_u24 v{T+2}, 3072, v{T}
v_and_b32 v{T+3}, 3, v1
v_lshl_add_u32 v{T+2}, v{T+1}, 7, v{T+2}
v_lshl_add_u32 v{T+2}, v{T+3}, 3, v{T+2}
v_bfe_u32 v{T+4}, v1, 3, 2
v_lshl_add_u32 v{T+2}, v{T+4}, 5, v{T+2}
v_add_u32 v{T+2}, {self.W0 + 1024}, v{T+2}
s_lshl_b32 s11, s3, 6
v_xor_b32 v{RA+1}, s11, v{T+2}
v_xor_b32 v{RA+4}, 32, v{RA+1}
s_lshl_b32 s54, s3, 5
v_xor_b32 v{RB+1}, s54, v{T+2}
v_xor_b32 v{RB+4}, 64, v{RB+1}
"""
        for b in (RA, RA + 3, RB, RB + 3):
            s += f"v_subrev_u32 v{b}, s5, v{b+1}\nv_add_u32 v{b+2}, s5, v{b+1}\n"
        for q in range(6):
            s += f"v_subrev_u32 v{RB+6+q}, 65536, v{RB+q}\n"
        s += f"""; x LDS read addresses
v_and_b32 v{T+1}, 15, v1
v_lshrrev_b32 v{T+2}, 1, v{T+1}
v_xor_b32 v{T+4}, v{T+2}, v{T}
v_lshlrev_b32 v{T+5}, 7, v{T+1}
v_lshl_add_u32 v{T+5}, v{T+4}, 4, v{T+5}
{self.cov3()}s_lshl_b32 s5, s4, 14
v_add_u32 v{XA[0]}, s5, v{T+5}
s_sub_u32 s5, {15*2048}, s5
v_add_u32 v{XH[0]}, s5, v{T+5}
v_xor_b32 v{XA[1]}, 64, v{XA[0]}
v_xor_b32 v{XH[1]}, 64, v{XH[0]}
v_add_u32 v{XA[2]}, 65536, v{XA[0]}
v_add_u32 v{XA[3]}, 65536, v{XA[1]}
v_add_u32 v{XH[2]}, 65536, v{XH[0]}
v_add_u32 v{XH[3]}, 65536, v{XH[1]}
s_mul_i32 s5, s4, {15*896}
s_add_u32 s40, s40, s5
"""
        for q in range(1, 8):
            s += f"s_add_u32 s{40+q}, s{39+q}, s52\n"
        s += "s_cmp_eq_u32 s3, 0\n"
        for q in range(4):
            s += f"s_cselect_b32 s{56+q}, s{40+2*q}, s{41+2*q}\n"
        s += f"""; A store offset
v_mul_u32_u24 v{T+5}, 14336, v{T+1}
v_lshrrev_b32 v{T+6}, 1, v{T}
v_lshl_add_u32 v{T+5}, v{T+6}, 4, v{T+5}
v_and_b32 v{T+7}, 1, v{T}
v_lshl_add_u32 v{T+5}, v{T+7}, 5, v{T+5}
s_add_u32 s5, s6, s11
v_add_u32 v{self.V_ST['A']}, s5, v{T+5}
s_lshl_b32 s5, s3, 1
v_or_b32 v{T+6}, s5, v{T+6}
v_and_b32 v{T+2}, 3, v{T+2}
v_xor_b32 v{T+6}, v{T+6}, v{T+2}
v_lshlrev_b32 v{T+5}, 6, v{T+1}
v_lshl_add_u32 v{T+5}, v{T+6}, 4, v{T+5}
v_lshl_add_u32 v{T+5}, v{T+7}, 3, v{T+5}
s_mul_i32 s5, s4, 12288
s_add_u32 s5, s5, {self.STG}
v_add_u32 v{self.V_XW}, s5, v{T+5}
; exchange read address and B store offsets
v_lshrrev_b32 v{T+5}, 2, v1
v_bfe_u32 v{T+6}, v1, 3, 2
v_xor_b32 v{T+6}, v{T+6}, v{T+3}
v_lshlrev_b32 v{T+7}, 6, v{T+5}
v_lshl_add_u32 v{T+7}, v{T+6}, 4, v{T+7}
s_lshl_b32 s4, s3, 10
s_add_u32 s5, s5, s4
v_add_u32 v{self.V_XR}, s5, v{T+7}
v_mul_u32_u24 v{T+5}, 14336, v{T+5}
v_lshl_add_u32 v{T+5}, v{T+3}, 4, v{T+5}
v_add_u32 v{self.V_ST['F']}, s10, v{T+5}
v_add_u32 v{self.V_ST['S']}, s7, v{T+5}
; constants
v_lshlrev_b32 v{T+5}, 4, v{T}
v_add_u32 v{T+5}, {self.CONST}, v{T+5}
s_lshl_b32 s4, s3, 7
v_add_u32 v{self.V_CA['A']}, s4, v{T+5}
s_add_u32 s4, s11, 256
v_add_u32 v{self.V_CA['B']}, s4, v{T+5}
v_lshlrev_b32 v{self.V_CW}, 3, v1
v_add_u32 v{self.V_CW}, {self.CONST}, v{self.V_CW}
"""
        if not self.q_early:
            s += self.par_addr()
        if self.rot:
            for c in range(1, 7):
                s += f"s_add_u32 s{90+c}, s{89+c}, 128\ns_cmp_eq_u32 s{90+c}, 896\ns_cselect_b32 s{90+c}, 0, s{90+c}\n"
        return s

    def par_addr(self):
        T = self.V_T + 12
        return f"""s_sub_u32 s4, s10, 128
s_sub_u32 s5, s7, 192
v_mov_b32 v{T}, s6
v_mov_b32 v{T+1}, s4
v_cmp_gt_u32 vcc, 32, v1
v_mov_b32 v{T+2}, s5
s_nop 0
v_cndmask_b32 v{T}, v{T+1}, v{T}, vcc
v_cmp_gt_u32 vcc, 48, v1
s_nop 1
v_cndmask_b32 v{T}, v{T+2}, v{T}, vcc
v_lshl_add_u32 v{T}, v1, 2, v{T}
"""

    def par_loads(self):
        T = self.V_T + 12
        return [dict(k='vmem', t=f"global_load_dword v{self.V_PAR[q]}, v{T}, s[{12+2*q}:{13+2*q}]", tag=('par',)) for q in range(4)]

    def build(self, par):
        self.par = par
        self.sval = {}
        self.nstamp = 0
        self.stampnames = []
        L, P, PA, LEAD, NX, NW, NS = self.L, self.P, self.PA, self.LEAD, self.NX, self.NW, self.NS
        nb = (14 - L) // 2
        assert L % 2 == 0 and P <= L
        units = []
        for t in range(14):
            units.append(('A', t))
            if t < 2 * nb:
                units.append(('B', t))
        lag = list(range(2 * nb, 14))
        nre = max(0, len(lag) - NS)
        reread = self.reread if self.reread is not None else lag[len(lag) - 2 - nre:len(lag) - 2]
        order2 = [12, 13] + sorted(reread) + [t for t in lag[:-2] if t not in reread]
        if self.order:
            units = [(x[0], int(x[1:])) for x in self.order if x[0] in 'AB']
            to2 = [int(x[1:]) for x in self.order if x[0] == 'T']
            P = len(to2)
        else:
            to2 = order2[L - P:]
            units += [('B', t) for t in order2[:L - P]]
        NU = len(units)
        assert sorted(units + [('B', t) for t in to2]) == sorted((g_, t) for g_ in 'AB' for t in range(14))
        kA = units.index(('A', 14 - PA))
        assert units[kA:kA + PA] == [('A', t) for t in range(14 - PA, 14)]
        upos = {u: k for k, u in enumerate(units)}
        ufirst = dict(upos)
        ulast = dict(upos)
        for t in range(14 - PA, 14):
            ufirst[('A', t)] = kA
            ulast[('A', t)] = kA + PA - 1
        for t in to2:
            upos[('B', t)] = ufirst[('B', t)] = ulast[('B', t)] = NU
        inst = []
        for t in range(14):
            if t in reread:
                inst += [(ufirst[('A', t)], ulast[('A', t)], (t, 1)), (upos[('B', t)], upos[('B', t)], (t, 2))]
            else:
                inst.append((ufirst[('A', t)], upos[('B', t)], (t, 1)))
        inst.sort()
        busy = [-9] * NS
        xset = {}
        for a_, b_, key in inst:
            q = min(range(NS), key=lambda i: busy[i])
            assert busy[q] < a_, ("x register sets exhausted", key)
            busy[q] = b_
            xset[key] = q

        def xinst(g, t):
            return (t, 2) if (g == 'B' and t in reread) else (t, 1)

        def xreg(g, t, i):
            return ('a', xset[xinst(g, t)] * XS + i * 4)
        ring = [('a', r) for r in range(NS * XS, 256, 4)] + [('v', r) for r in self.V_FREE]
        NF = len(ring)
        self.wslot = {}
        mf = []
        frags = {}
        xuse = {}
        unit_first = {}
        seen = set()
        tile_end = {}
        lastuse = {}

        def add(g, t, n, s, tap, reg):
            i = s + tap - 1
            if i < 0:
                return
            first = (g, n, s) not in seen
            seen.add((g, n, s))
            xuse.setdefault((xinst(g, t), i), [len(mf), 0])[1] = len(mf)
            frags.setdefault((g, t, n, tap), dict(first=len(mf), reg=reg))['last'] = len(mf)
            lastuse[reg] = lastuse[xreg(g, t, i)] = len(mf)
            mf.append(self.mfma(g, n, s, reg, xreg(g, t, i), first))
            tile_end[(g, n, s)] = len(mf) - 1
        for k, (g, t) in enumerate(units):
            if kA < k < kA + PA:
                unit_first[(g, t)] = unit_first[units[kA]] + 46 * (k - kA)
                continue
            unit_first[(g, t)] = len(mf)
            if k == kA:
                for s in range(8):
                    for n in range(2):
                        for q in range(PA):
                            for tap in range(3):
                                add(g, t + q, n, s, tap, ring[(6 * k + (n * PA + q) * 3 + tap) % NF])
            else:
                for n in range(2):
                    for s in self.rows(g, n):
                        for tap in range(3):
                            add(g, t, n, s, tap, ring[(6 * k + n * 3 + tap) % NF])
        M2 = len(mf)
        keep = {xreg('B', t, i) for t in to2 for i in range(9)}
        pool = sorted((lu, r) for r, lu in lastuse.items() if r not in keep)
        assert len(pool) >= 6 * P, (len(pool), P)
        for n in range(2):
            for s in self.rows('B', n):
                for q, t in enumerate(to2):
                    for tap in range(3):
                        add('B', t, n, s, tap, pool[(n * P + q) * 3 + tap][1])
        NM = len(mf)
        assert NM == 14 * (80 + par)
        XL = self.XL
        bpos = [unit_first[u] - (self.blead[k - 1] if 1 <= k <= len(self.blead) else LEAD + XL) - 1 for k, u in enumerate(units)]
        bpos[kA] -= 3 * (PA - 1) * 2
        if PA > 1 and self.early:
            bpos[kA + 1] = unit_first[units[kA]] + self.kz
        need = [[] for u in units]
        for u in units:
            need[ufirst[u]].append(('w',) + u)
        xbar = {}
        for c in range(7):
            xbar[c] = ufirst[('A', 2 * c)]
            need[xbar[c]].append(('x', c))
        bpos.append(M2 - LEAD - XL - 1 - 3 * P)
        assert bpos == sorted(bpos)
        need.append([('w', 'B', t) for t in to2])
        bpos.append(M2)
        need.append([])
        nbar = len(bpos)
        pro = self.pro.split(',')
        sched = {p: [] for p in range(-1, nbar)}
        relbar = set()
        xrel = {}
        for c in range(7):
            xrel[c] = max(min(upos[('B', t)] + 2, NU + 1) if t in reread else (ufirst if self.early else ulast)[('A', t)] + 1 for t in (2 * c, 2 * c + 1))
        pp = -1
        for c in range(7):
            if f'x{c}1' in pro:
                p = -1
            else:
                p = max(xrel[c - NX] if c >= NX else 0, xbar[c] - self.xahead, pp + 1)
                if self.xsched:
                    p = self.xsched[c]
                if c >= NX:
                    relbar.add(p)
            assert p < xbar[c]
            pp = p
            sched[p].append(('x', c))
        stg_rel = max(xrel[c] for c in range(7 - NX, 7) if self.xb(c) == 0)
        assert stg_rel < nbar
        relbar.add(max(stg_rel, NU))
        slots = [[-1, self.W0 + i * WSLOT] for i in range(NW)]
        for i in range(5):
            a_ = self.W0 - 65536 + i * WSLOT
            av = max(xrel[c] for c in range(7 - NX, 7) if self.xb(c) * XBUF < a_ + WSLOT and a_ < (self.xb(c) + 1) * XBUF)
            slots.append([av, a_])
        pp = -1
        for k, u in enumerate(units + [('B', t) for t in to2]):
            sl = min(slots if u[0] == 'B' else slots[:NW], key=lambda x: x[0])
            p = max(sl[0], 0, pp)
            if k < NW:
                p = max(p, k - self.wahead)
            if self.dmaeven and p % 2 == self.dmaeven % 2 and p + 2 < ufirst[u] + 1 and k < self.dmaeven_until:
                p += 1
            if f'w{k}' in pro:
                p = -1
            else:
                relbar.add(p)
            assert p < ufirst[u], (k, u, p)
            pp = p
            self.wslot[u] = sl[1]
            sl[0] = (kA + 1 if (self.early and PA > 1 and kA <= k < kA + PA) else ufirst[u] + 2) if k < NU else 999
            sched[p].append(('w', u))
        self.sched = sched
        self.units = units

        seq = self.stamp('p0')
        donew = done2 = False
        for q, tok in enumerate(pro):
            if tok[0] == 'w' and not donew:
                if q > 0:
                    seq.append(dict(k='raw', t=self.prologue_w()))
                donew = True
            if tok[0] == 'p':
                seq += self.pf_w(int(tok[1]))
            elif tok[0] == 'x':
                seq += self.dma_x(int(tok[1]), (int(tok[2]),))
            elif tok[0] == 'w':
                seq += self.dma_w(*units[int(tok[1:])])
            elif tok == 'q':
                seq += self.par_loads()
            elif tok == 'C':
                assert done2
                seq.append(dict(k='vmwait', t='', tag=('par',)))
                seq += self.consts()
            elif tok == 'S':
                assert donew
                seq.append(dict(k='raw', t=self.prologue2()))
                done2 = True
        assert done2
        seq += self.stamp('p2')
        seq.append(dict(k='raw', t="@HOP@"))

        gaps = {g: dict(pre=[], z=[], mem=[], v=[], used=0, excl=False) for g in range(-1, NM)}
        g = self.first
        lastl = -1
        pfdone = set()
        issue_end = {}
        for p in range(0, nbar):
            l = sched[p]
            g = max(g, bpos[p] + 3)
            ws_, xs_ = [x for x in l if x[0] == 'w'], [x for x in l if x[0] == 'x']
            nw_ = self.xfirst.get(p, 99)
            for kind, arg in ws_[:nw_] + xs_ + ws_[nw_:] + ([('par', 0)] if p == self.parbar and not self.q_early else []):
                if kind == 'x':
                    cs = [c_ for c_ in range(7) if f'p{c_}' not in pro and c_ not in pfdone and c_ <= arg + self.pfmode // 2]
                    pfdone |= set(cs)
                    pf = [y for c_ in cs for y in self.pf_w(c_)]
                    items = self.dma_x(arg, [hf for hf in (0, 1) if f'x{arg}{hf}' not in pro])
                    items = items + pf if self.pfmode % 2 else pf + items
                    sp = self.xsp
                elif kind == 'w':
                    items = self.dma_w(*arg)
                    sp = self.wsp
                else:
                    items = self.par_loads()
                    sp = 2
                pend = []
                for it in items:
                    if it['k'] == 'vmem':
                        g = max(g, lastl + 1 + len([x for x in pend if x['k'] != 'none']))
                        gaps[g]['mem'].append(it)
                        gaps[g]['used'] = 2
                        gaps[g]['excl'] = True
                        q = g - 1
                        for x in reversed(pend):
                            gaps[q]['z'].insert(0, x)
                            if x['k'] == 'salu8':
                                gaps[q]['used'] += 1
                            if x['k'] != 'none':
                                q -= 1
                        pend = []
                        issue_end[it['tag']] = g
                        lastl = g
                        g += sp
                    else:
                        pend.append(it)
        self.stmin = lastl if self.stdelay else 0
        vis = {}
        self.kept = []
        for p in range(nbar):
            mine = [tg for tg in need[p] if tg not in vis]
            if mine or p in relbar:
                mine += [tg for q in range(p + 1, nbar) for tg in need[q] if tg not in vis and issue_end.get(tg, 0) + self.safe <= bpos[p]]
                for tg in mine:
                    vis[tg] = max(bpos[p], -1)
                gaps[max(bpos[p], -1)]['pre'].append(dict(k='bar', need=mine, idx=p))
                self.kept.append(p)
            gaps[max(bpos[p], -1)]['pre'] += self.stamp(f'B{p:02d}')
        allr = []
        for (g, t, n, tap), f in frags.items():
            allr.append((f['first'], f['last'], f['reg'], [self.rd_w(g, t, n, tap, h, f['reg']) for h in range(2)], ('w', g, t)))
        for ((t, ph), i), (a, b) in xuse.items():
            d = ('a', xset[(t, ph)] * XS + i * 4)
            if ph == 2 and t in to2:
                a = min(a, M2 + i)
            if ph == 1 and t >= 14 - PA:
                a = min(a, unit_first[units[kA]] + 10 + 2 * i + (16 if t > 14 - PA else 0))
            allr.append((a, b, d, [self.rd_x(t, i, d)], ('x', t // 2)))
        allr.sort(key=lambda x: x[0])
        reads = []
        prev_last = {}
        for a, b, reg, items, tg in allr:
            e = max(vis[tg], prev_last.get(reg, -1))
            prev_last[reg] = b
            for it in items:
                reads.append([a - LEAD, e, it, a])
        nxt = 10 ** 9
        E0 = min(tile_end.values())
        cnt = 0
        for r in reversed(reads):
            if self.dspair and nxt < 10 ** 9 and nxt >= E0 and cnt == 1 and gaps[nxt]['used'] == 0 and r[0] + 6 >= nxt:
                r[0] = nxt
                cnt = 2
                continue
            cnt = 1
            q = min(r[0], nxt - (2 if (self.dspair and nxt >= E0) else 1))
            while q >= 0 and gaps[q]['excl']:
                q -= 1
            r[0] = nxt = q
        cur = -1
        self.minlead = 999
        for tg, e, it, a in reads:
            g = max(tg, e, cur)
            if g < 0 and a >= self.nfirst:
                g = 0
            while g >= 0 and (gaps[g]['excl'] or gaps[g]['used'] >= 2):
                g += 1
            cur = g
            if a > 40:
                self.minlead = min(self.minlead, a - g)
            assert g < a, (g, a, it)
            gaps[g]['mem'].append(it)
            gaps[g]['used'] += 1

        def fill(items, g):
            for it in items:
                g += 1
                while gaps[g]['used'] > 0:
                    g += 1
                gaps[g]['mem' if it['k'] == 'ds' else 'v'].append(it)
                gaps[g]['used'] = 3 if (it['k'] == 'ds' and it.get('r')) else 2
            return g
        g = fill(self.consts(), bpos[self.parbar + 4] + 1) if 'C' not in pro else 0
        assert g < E0 - 90
        g = fill(self.const_reads(), E0 - 90)
        assert g < E0 - 8
        tiles = [('A', n, s) for s in range(8) for n in range(2)] + [('B', n, s) for n in range(2) for s in self.rows('B', n)]
        best = None
        for ep in ([tuple(self.ep)] if self.ep else [(b, n_, f) for b in range(3, 11) for n_ in (2, 3) for f in (2, 3, 4, 5)]):
            ex, fin, tl = self.epi_schedule(gaps, tiles, tile_end, NM, ep, False)
            if best is None or fin < best[0]:
                best = (fin, ep)
        ex, fin, tail = self.epi_schedule(gaps, tiles, tile_end, NM, best[1], True)
        gaps[tile_end[('A', 1, 7)]]['pre'] += self.stamp('Aend')
        gaps[M2 - 1]['pre'] += self.stamp('M2')
        acc_ = 0
        estseg = []
        for q in range(NM):
            if any(x['k'] == 'smem' for x in gaps[q]['pre']):
                estseg.append(acc_); acc_ = 0
            acc_ += 16 + 4 * max(0, gaps[q]['used'] - 2)
        estseg.append(acc_)
        waste = sum(max(0, 2 - gaps[q]['used']) for q in range(E0 + 3, NM - 1))
        for g in range(-1, NM):
            if g >= 0:
                seq.append(mf[g])
            G = gaps[g]
            seq += G['pre'] + G['z'] + G['mem'] + G['v']
        seq += self.stamp('mfend') + tail + self.stamp('tail')
        out = self.finalize(seq)
        self.info.append(f"par {par}: NM {NM} E0 {E0} M2 {M2} est {16*NM+ex} fin {16*NM+fin} ep {best[1]} waste {waste} tail {len(tail)} minlead {self.minlead} "
                         f"waits {self.nwait} nops {self.nnop} NF {NF} barriers {len(self.kept)} estseg {estseg}")
        return out

    def finalize(self, seq):
        out = []
        lds_ops, lds_reg = [], []
        lds_done = bar_done = 0
        pend = {}
        vm_ops = [('warm',)]
        vm_done = 0
        landed = set()
        nm = 0
        hist = []
        xw_idx = {}
        xw_ok = set()

        def emit(it):
            out.append(it)
            n = len([l for l in it['t'].split('\n') if l.strip() and not l.strip().startswith(';')])
            for _ in range(n - 1):
                hist.append(dict(k='x'))
            hist.append(it)

        def dist_since(pred):
            d = 0
            for h in reversed(hist):
                if pred(h):
                    return d
                d += h.get('states', 1)
                if d > 24:
                    break
            return 99

        def war(a, b, it):
            for i, rg in enumerate(lds_reg):
                if rg and rg[0] < b and a < rg[1]:
                    assert i < bar_done, ("WAR on LDS region", it, i, bar_done)
        nwait = nnop = 0
        cur_m0 = None
        cur_so = {}
        owner = []
        for it in seq:
            k = it['k']
            if k == 'smem':
                kk = self.nstamp
                self.nstamp += 1
                assert kk < (13 if self.rot else 17)
                it['t'] = f"s_memtime s[{64+2*kk}:{65+2*kk}]"
                self.stampnames.append(it['name'])
            if it.get('store') and self.nostore:
                continue
            if k == 'vmwait':
                last = max(i for i, x in enumerate(vm_ops) if x == it['tag'])
                emit(dict(k='wait', t=f"s_waitcnt vmcnt({len(vm_ops) - last - 1})"))
                vm_done = max(vm_done, last + 1)
                continue
            if k == 'bar':
                last = -1
                for tg in it['need']:
                    idxs = [i for i, x in enumerate(vm_ops) if x == tg]
                    assert len(idxs) == (8 if tg[0] == 'x' else 3), ("barrier needs un-issued group", tg, it['idx'])
                    last = max(last, idxs[-1])
                wt = ""
                if last + 1 > vm_done:
                    N = len(vm_ops) - (last + 1)
                    assert N <= 63
                    wt += f" vmcnt({N})"
                    vm_done = last + 1
                j = lds_done
                while j < len(lds_ops) and lds_ops[j] <= nm - 10:
                    j += 1
                if 'xw' in it:
                    assert len(xw_idx[it['xw']]) == 2 * self.xgrp[it['xw']]
                    j = max(j, max(xw_idx[it['xw']]) + 1, len(lds_ops) - 15)
                    xw_ok.add(it['xw'])
                if j > lds_done and len(lds_ops) - j <= 15:
                    wt += f" lgkmcnt({len(lds_ops) - j})"
                    lds_done = j
                if wt:
                    emit(dict(k='wait', t="s_waitcnt" + wt))
                if not ('xw' in it and 'b' in self.skip):
                    emit(dict(k='salu', t="s_barrier"))
                bar_done = lds_done
                full = {}
                for i, x in enumerate(vm_ops):
                    full[x] = full.get(x, True) and i < vm_done
                landed = {x for x, f in full.items() if f}
                continue
            if it.get('m0'):
                cur_m0 = it['m0']
            if it.get('sow'):
                cur_so[it['sow'][0]] = it['sow']
            if k == 'none':
                continue
            if it.get('so'):
                assert cur_so[it['so'][0]] == it['so'], (cur_so, it)
            if it.get('dma') or it.get('wregion'):
                if it.get('dma'):
                    assert cur_m0 == it['dma'], (cur_m0, it)
                a, b = it.get('wregion') or it['region']
                war(a, b, it)
                owner = [(rg, tg) for rg, tg in owner if not (rg[0] < b and a < rg[1])] + [((a, b), it.get('tag'))]
            if 'xw' in it:
                xw_idx.setdefault(it['xw'], []).append(len(lds_ops))
            if 'xw' in it and 'w' in self.skip:
                it['t'] = f"ds_read_b64 v[2:3], v{self.V_XW}"
            if 'xr' in it:
                assert it['xr'] in xw_ok
            if 'need' in it:
                assert it['need'] in landed, ("read before landed", it)
                assert (it['region'], it['need']) in owner, ("region overwritten", it)
            if 'needvm' in it:
                assert max(i for i, x in enumerate(vm_ops) if x == it['needvm']) < vm_done
            need = -1
            for r in it.get('r', []) + (it.get('w', []) if k != 'ds' else []):
                if r in pend and pend[r] >= lds_done:
                    need = max(need, pend[r])
            if need >= 0:
                j = need
                while j + 1 < len(lds_ops) and lds_ops[j + 1] <= nm - 9:
                    j += 1
                N = min(len(lds_ops) - (j + 1), 15)
                emit(dict(k='wait', t=f"s_waitcnt lgkmcnt({N})"))
                nwait += 1
                lds_done = len(lds_ops) - N
            rs = set(it.get('r', [])); ws = set(it.get('w', []))
            pad = 0
            if k in ('valu', 'trans', 'vmem', 'ds'):
                pad = max(pad, 8 - dist_since(lambda h: h['k'] == 'mfma' and (set(h['w']) & (rs | ws))))
            if k == 'valu':
                pad = max(pad, 1 - dist_since(lambda h: h['k'] == 'trans' and (set(h['w']) & rs)))
            if it.get('perm'):
                pad = max(pad, 2 - dist_since(lambda h: h['k'] in ('valu', 'trans') and (set(h['w']) & rs)))
            if k in ('valu', 'trans', 'ds'):
                pad = max(pad, 2 - dist_since(lambda h: h.get('store') and (set(h['r']) & ws)))
            if it.get('dma'):
                pad = max(pad, 1 - dist_since(lambda h: h.get('m0')))
            if pad > 0:
                emit(dict(k='nop', t=f"s_nop {pad-1}", states=pad))
                nnop += 1
            emit(it)
            if k == 'ds':
                for r in it.get('w', []):
                    pend[r] = len(lds_ops)
                lds_ops.append(nm)
                lds_reg.append(it.get('region'))
            if k == 'vmem':
                vm_ops.append(it['tag'])
            if k == 'mfma':
                nm += 1
        self.nwait, self.nnop = nwait, nnop
        return '\n'.join(x['t'].rstrip('\n') for x in out) + '\n'

    def ending(self):
        s = ""
        if self.twice:
            s += "s_waitcnt vmcnt(0) lgkmcnt(0)\ns_barrier\ns_add_u32 s101, s101, 1\ns_cmp_eq_u32 s101, 1\ns_cbranch_scc1 L_again\n"
        if self.diag:
            s += "s_waitcnt vmcnt(0)\ns_memtime s[56:57]\ns_memrealtime s[58:59]\ns_waitcnt lgkmcnt(0)\n"
            s += "v_mov_b32 v2, 0\nv_mov_b32 v3, 0\n"
            for k in range(self.nstamp):
                s += f"s_sub_u32 s{64+2*k}, s{64+2*k}, s60\nv_writelane_b32 v2, s{64+2*k}, {k}\n"
            s += f"s_sub_u32 s56, s56, s60\nv_writelane_b32 v2, s56, {self.nstamp}\ns_sub_u32 s98, s98, s60\nv_writelane_b32 v3, s98, 61\nv_writelane_b32 v3, s58, 62\nv_writelane_b32 v3, s62, 63\n"
            s += """s_mov_b32 s24, s22
s_mov_b32 s25, s23
s_mov_b32 s26, 0x1000000
s_mov_b32 s27, 0x20000
v_lshlrev_b32 v4, 3, v0
s_lshl_b32 s3, s2, 11
buffer_store_dwordx2 v[2:3], v4, s[24:27], s3 offen
"""
        if self.spin:
            s += "s_waitcnt vmcnt(0)\n"
            if self.spin == 'end':
                s += "s_memrealtime s[62:63]\n"
            s += "s_waitcnt lgkmcnt(0)\ns_memrealtime s[58:59]\ns_waitcnt lgkmcnt(0)\ns_sub_u32 s58, s58, s62\ns_cmp_lt_u32 s58, 4000\ns_cbranch_scc1 -7\n"
        return s + "s_endpgm\n"

    def padded(self, body, par):
        import subprocess, re
        open('pad.s', 'w').write('.amdgcn_target "amdgcn-amd-amdhsa--gfx950"\n.text\nL_again:\ns_mov_b64 exec, -1\n' + body)
        subprocess.run(["clang", "-x", "assembler", "-target", "amdgcn-amd-amdhsa", "-mcpu=gfx950", "-c", "pad.s", "-o", "pad.o"], check=True)
        dis = subprocess.run(["llvm-objdump", "-d", "--mcpu=gfx950", "pad.o"], capture_output=True, text=True).stdout
        addrs = [int(m.group(1), 16) for m in re.finditer(r"// ([0-9A-F]{12}):", dis)][1:]
        lines = [l for l in body.split('\n') if l.strip()]
        assert len(lines) == len(addrs), (len(lines), len(addrs))
        ins = {}
        page = 1
        while True:
            sh = 4 * (page - 1)
            c = [k for k in range(len(lines)) if page * 4096 <= addrs[k] + sh < page * 4096 + 56]
            if not c:
                break
            good = [k for k in c if lines[k - 1].startswith('v_mfma') and not lines[k].startswith(('s_', 'buffer'))]
            ins[(good + c)[0]] = page
            page += 1
        npad = page - 1
        assert npad >= 4
        out = [".p2align 12", f"L_body{par}:", "s_mov_b64 exec, -1"]
        for i, l in enumerate(lines):
            if i in ins:
                p = ins[i]
                out.append(f"L_pad{par}_{p}:")
                out.append(f"s_cbranch_execz {'L_pad%d_%d' % (par, p + 4) if p + 4 <= npad else 'L_body%d' % par}")
            out.append(l)
        return '\n'.join(out) + '\n'

    def text(self):
        self.info = []
        parts = [self.build(par).split("@HOP@\n") for par in range(2)]
        assert parts[0][0] == parts[1][0]
        s = header(256, 256, self.LDS)
        if self.twice:
            s += "s_mov_b32 s101, 0\nL_again:\n"
        s += self.prologue() + parts[0][0]
        s += "; visit the first line of every code page once (EXEC = 0, branches only) while the first tiles are in flight\n"
        s += "s_mov_b64 exec, 0\ns_bitcmp1_b32 s37, 0\ns_cbranch_scc1 L_hop1\n"
        for par in range(2):
            if par:
                s += "L_hop1:\n"
            for w in range(3):
                s += f"s_cmp_eq_u32 s36, {w}\ns_cbranch_scc1 L_pad{par}_{w+1}\n"
            s += f"s_branch L_pad{par}_4\n"
        s += "L_exit:\ns_endpgm\n"
        for par in range(2):
            b = self.padded(parts[par][1] + self.ending(), par)
            if par:
                b = b[:-len("s_endpgm\n")] + "L_last:\ns_endpgm\n"
            s += b
        s += footer(512, 102, 256)
        return s


def parse(args):
    o = {}
    for a in args:
        k, v = a.split('=', 1)
        if k in ('sel', 'order'):
            v = v.split(',')
        elif k == 'xfirst':
            v = {int(q.split(':')[0]): int(q.split(':')[1]) for q in v.split(',')}
        elif k in ('xsched', 'blead', 'reread', 'ep', 'xgrp'):
            v = [int(q) for q in v.split(',')]
        else:
            try:
                v = int(v)
            except ValueError:
                v = v.replace('_', ' ')
        o[k] = v
    return o


if __name__ == '__main__':
    g = Gen(**parse(sys.argv[2:]))
    t = g.text()
    open(sys.argv[1], 'w').write(t)
    print(sys.argv[1], "bytes", len(t), "stamps", g.stampnames)
    for l in g.info:
        print("   ", l)
    if 'verbose' in g.__dict__:
        for p in sorted(g.sched):
            print(p, g.units[p:p + 1] if p >= 0 else '', g.sched[p], 'kept' if p in g.kept else '')
```

```python
import sys
sys.path.insert(0, 'tools')
from common import *

NLOG2E = 0xbfb8aa3b
WSLOT = 12288
XBUF = 32768
XS = 36


def V(t, r, w, tr=False, **kw):
    d = dict(k='trans' if tr else 'valu', t=t, r=[('v', x) for x in r], w=[('v', x) for x in w])
    d.update(kw)
    return d


def rn(r, n=4, o=0):
    return f"{r[0]}[{r[1]+o}:{r[1]+o+n-1}]"


def rl(r, n=4, o=0):
    return [(r[0], r[1] + o + q) for q in range(n)]


class Gen:
    def __init__(self, **o):
        d = dict(L=6, P=5, PA=2, LEAD=20, XL=6, NS=6, NX=3, NW=5, diag=False, sel=None, nostore=False, pol='sc0 sc1', xpol='nt',
                 wpol='', pfpol='', xsp=4, wsp=4, wahead=3, xahead=4, xsched=None, twice=0, parbar=3,
                 pro='p0,x00,x01,w0,S,w1,w2', blead=(20, 28, 20, 28), dmaeven=1, dmaeven_until=21, pfmode=0, first=3, nfirst=12,
                 reread=None, order=None, xrot=1, safe=90, NT=8, dspair=1, stsp=14, tast=260, tasb=70, ep=None, xlag=7, rlag=9, stdelay=1, skip='', early=1, kz=16, xfirst={}, cov=3, enc=None, spin=None, rot=0, xgrp=(2, 2, 1, 1))
        d.update(o)
        self.__dict__.update(d)
        self.W0 = self.NX * XBUF
        self.CONST = self.W0 + self.NW * WSLOT
        self.LDS = self.CONST + 1024
        self.STG = 0
        assert self.LDS <= 163840
        self.q_early = 'q' in self.pro.split(',')

    V_DUM = 2
    V_XD = (6, 7, 8, 9)
    V_WD = {'A': (10, 11, 12), 'B': (13, 14, 15)}
    V_RA = 16
    V_RB = 22
    V_XA = (34, 35, 36, 37)
    V_XH = (38, 39, 40, 41)
    V_ST = {'A': 42, 'F': 43, 'S': 44}
    V_XW, V_XR = 45, 46
    V_CA = {'A': 47, 'B': 48}
    V_CW, V_PF = 49, 50
    V_C = 52
    V_PAR = (52, 53, 54, 55)
    V_T = 56
    V_ET = 84
    V_FREE = list(range(100, 144, 4))
    V_ACC = 144

    def srows(self, n):
        return list(range(8)) if n == 0 else list(range(4 * self.par, 4 * self.par + 4))

    def rows(self, g, n):
        return list(range(8)) if g == 'A' else self.srows(n)

    def acc(self, g, n, s):
        if g == 'A':
            return self.V_ACC + (s * 2 + n) * 4
        return self.V_ACC + 64 + (s if n == 0 else 8 + s % 4) * 4

    def stamp(self, name=''):
        if self.spin == name:
            return [dict(k='raw', t="s_memrealtime s[62:63]")]
        if self.enc:
            a, b, kind, sg = self.enc.split(':')
            ins = "s_memtime" if kind == 'cyc' else "s_memrealtime"
            if name in (a, b):
                return [dict(k='raw', t=f"{ins} s[64:65]" if name == a else f"{ins} s[66:67]")]
        if not self.diag or (self.sel and not any(name.startswith(p) for p in self.sel)):
            return []
        return [dict(k='smem', t="STAMP", name=name)]

    def xb(self, c):
        return (c + self.xrot) % self.NX

    def sset(self, reg, base, val, **kw):
        old = self.sval.get(reg)
        self.sval[reg] = (base, val)
        if old and old[0] == base and -32768 <= val - old[1] < 32768:
            if val == old[1]:
                return dict(k='none', t="", **kw)
            return dict(k='salu', t=f"s_addk_i32 {reg}, {val - old[1]}", **kw)
        if base is None:
            if 0 <= val < 32768:
                return dict(k='salu', t=f"s_movk_i32 {reg}, {val}", **kw)
            return dict(k='salu8', t=f"s_mov_b32 {reg}, {val}", **kw)
        if val == 0:
            return dict(k='salu', t=f"s_mov_b32 {reg}, {base}", **kw)
        return dict(k='salu8', t=f"s_add_u32 {reg}, {base}, {val}", **kw)

    def dma_x(self, c, halves=(0, 1)):
        buf = self.xb(c) * XBUF
        out = []
        for hf in halves:
            so = ('s48', 's49')[hf]
            if self.rot:
                out.append(dict(k='salu', t=f"s_add_u32 {so}, {('s8', 's9')[hf]}, s{90+c}", sow=('x', c, hf)))
            else:
                out.append(self.sset(so, ('s8', 's9')[hf], c * 128, sow=('x', c, hf)))
            if self.cov & 1:
                out.append(self.sset('m0', ('s20', 's100')[hf], buf, m0=('x', c, hf)))
            else:
                out.append(self.sset('m0', 's20', buf + hf * 4096, m0=('x', c, hf)))
            for k in ((0, 2, 1, 3) if self.cov & 2 else range(4)):
                out.append(dict(k='vmem', t=f"buffer_load_dwordx4 v{self.V_XD[k]}, s[24:27], {so} offen offset:{k*1024} {self.xpol} lds",
                                tag=('x', c), dma=('x', c, hf), so=('x', c, hf), region=(buf, buf + XBUF)))
        return out

    def dma_w(self, g, t):
        slot = self.wslot[(g, t)]
        if self.rot:
            out = []
            if self.sval.get('s53', (None,))[0] != ('c', t // 2):
                out.append(dict(k='salu8', t=f"s_mul_i32 s53, s{90+t//2}, 448", sow=('w', None)))
                self.sval['s53'] = (('c', t // 2), 0)
            out.append(self.sset('s53', ('c', t // 2), (t % 2) * 28672, sow=('w', g, t)))
        else:
            out = [self.sset('s53', None, t * 28672, sow=('w', g, t))]
        out.append(self.sset('m0', 's21', slot, m0=('w', g, t)))
        for tap in range(3):
            out.append(dict(k='vmem', t=f"buffer_load_dwordx4 v{self.V_WD[g][tap]}, s[28:31], s53 offen offset:{tap*1024} {self.wpol} lds",
                            tag=('w', g, t), dma=('w', g, t), so=('w', g, t), region=(slot, slot + WSLOT)))
        return out

    def pf_w(self, c):
        return [dict(k='salu8', t=f"s_mul_i32 s55, s{90+c}, 448", sow=('p', c)) if self.rot else self.sset('s55', None, c * 57344, sow=('p', c)),
                dict(k='vmem', t=f"buffer_load_dword v{self.V_DUM + c % 2}, v{self.V_PF}, s[28:31], s55 offen {self.pfpol}", tag=('pf', c), so=('p', c))]

    def rd_w(self, g, t, n, tap, h, dst):
        slot = self.wslot[(g, t)]
        win = 0 if slot >= self.W0 else 1
        off = slot - self.W0 + win * 65536 + h * 512
        assert 0 <= off < 65536 and (g == 'B' or win == 0)
        base = (self.V_RA if g == 'A' else self.V_RB + win * 6) + n * 3 + tap
        return dict(k='ds', t=f"ds_read_b64_tr_b16 {rn(dst, 2, 2*h)}, v{base} offset:{off}", w=rl(dst, 2, 2 * h),
                    need=('w', g, t), region=(slot, slot + WSLOT))

    def rd_x(self, t, i, d):
        c, j = t // 2, t % 2
        buf = self.xb(c)
        a = (self.V_XA if i < 8 else self.V_XH)[(buf // 2) * 2 + j]
        off = (buf % 2) * XBUF + (i * 2048 if i < 8 else 0)
        return dict(k='ds', t=f"ds_read_b128 {rn(d)}, v{a} offset:{off}", w=rl(d), need=('x', c), region=(buf * XBUF, (buf + 1) * XBUF))

    def mfma(self, g, n, s, wreg, xr, first):
        a = self.acc(g, n, s)
        c = "0" if first else f"v[{a}:{a+3}]"
        return dict(k='mfma', t=f"v_mfma_f32_16x16x32_bf16 v[{a}:{a+3}], {rn(wreg)}, {rn(xr)}, {c}",
                    r=rl(wreg) + rl(xr), w=[('v', a + q) for q in range(4)], ops=(wreg, xr))

    def const_reads(self):
        o = []
        for q, (g, n) in enumerate((('A', 0), ('A', 1), ('B', 0), ('B', 1))):
            d = self.V_C + q * 8
            off = n * (64 if g == 'A' else 128)
            o.append(dict(k='ds', t=f"ds_read_b128 v[{d}:{d+3}], v{self.V_CA[g]} offset:{off}", w=rl(('v', d))))
            o.append(dict(k='ds', t=f"ds_read_b128 v[{d+4}:{d+7}], v{self.V_CA[g]} offset:{512+off}", w=rl(('v', d + 4))))
        return o

    def epi_pair(self, g, n, s, hh, j):
        a = self.acc(g, n, s) + 2 * hh
        T = self.V_ET + (j % self.NT) * 2
        sc = self.V_C + (n + (2 if g == 'B' else 0)) * 8 + 2 * hh
        sh = sc + 4
        d = self.acc(g, 0, s) + 2 * n + hh if g == 'A' else self.acc(g, n, s) + hh
        return [[V(f"v_pk_fma_f32 v[{a}:{a+1}], v[{a}:{a+1}], v[{sc}:{sc+1}], v[{sh}:{sh+1}]", [a, a + 1, sc, sc + 1, sh, sh + 1], [a, a + 1], pk=True,
                   alt=[V(f"v_fma_f32 v{a+i}, v{a+i}, v{sc+i}, v{sh+i}", [a + i, sc + i, sh + i], [a + i]) for i in range(2)])],
                [V(f"v_exp_f32 v{T+i}, v{a+i}", [a + i], [T + i], True) for i in range(2)],
                [V(f"v_pk_fma_f32 v[{T}:{T+1}], v[{T}:{T+1}], s[50:51], s[50:51]", [T, T + 1], [T, T + 1], pk=True,
                   alt=[V(f"v_fma_f32 v{T+i}, v{T+i}, s50, s50", [T + i], [T + i]) for i in range(2)])],
                [V(f"v_rcp_f32 v{T+i}, v{T+i}", [T + i], [T + i], True) for i in range(2)],
                [V(f"v_pk_mul_f32 v[{T}:{T+1}], v[{a}:{a+1}], v[{T}:{T+1}]", [a, a + 1, T, T + 1], [T, T + 1], pk=True,
                   alt=[V(f"v_mul_f32 v{T+i}, v{a+i}, v{T+i}", [a + i, T + i], [T + i]) for i in range(2)])],
                [V(f"v_cvt_pk_bf16_f32 v{d}, v{T}, v{T+1}", [T, T + 1], [d])]]

    def store(self, d, va, so):
        return dict(k='vmem', t=f"buffer_store_dwordx4 v[{d}:{d+3}], v{va}, s[32:35], s{so} offen {self.pol}".rstrip(),
                    r=rl(('v', d)), store=True, tag=('st',))

    def epi_schedule(self, gaps, tiles, tile_end, NM, ep, commit):
        bmin, ntrmax, fmax = ep
        jobs = []
        posts = {}
        for g, n, s in tiles:
            key = ('A', s) if g == 'A' else ('W', n, s)
            for hh in range(2):
                jobs.append(dict(st=self.epi_pair(g, n, s, hh, len(jobs)), i=0, rdy=tile_end[(g, n, s)] + 3, key=key, j=len(jobs)))
            if key in posts:
                continue
            if g == 'A':
                pk = self.acc('A', 0, s)
                posts[key] = dict(left=4, rdy=None, nxt=None, st=[
                    ('perm', V(f"v_permlane16_swap_b32 v{pk}, v{pk+2}", [pk, pk + 2], [pk, pk + 2], perm=True), 0),
                    ('perm', V(f"v_permlane16_swap_b32 v{pk+1}, v{pk+3}", [pk + 1, pk + 3], [pk + 1, pk + 3], perm=True), 1),
                    ('store', self.store(pk, self.V_ST['A'], 40 + s), 0)])
            else:
                a = self.acc(g, n, s)
                item = s if n == 0 else 8 + s % 4
                rg = (self.STG, self.STG + 24576)
                pi = item // 2
                grp = [q for q, z in enumerate(self.xgrp) for _ in range(z)][pi]
                posts[key] = dict(left=2, rdy=None, nxt=[('G', grp)], st=[
                    ('dsw', dict(k='ds', t=f"ds_write_b64 v{self.V_XW}, v[{a}:{a+1}] offset:{item*1024}", r=rl(('v', a), 2), w=[], wregion=rg, xw=grp), self.xlag)])
                if s % 2 == 0:
                    if ('G', grp) not in posts:
                        posts[('G', grp)] = dict(left=2 * self.xgrp[grp], rdy=None, nxt=[], st=[('bar', dict(k='bar', need=[], idx=('G', grp), xw=grp), 0)])
                    posts[('G', grp)]['nxt'].append(('X', pi))
                    posts[('X', pi)] = dict(left=1, rdy=None, nxt=None, st=[
                        ('dsr', dict(k='ds', t=f"ds_read_b128 v[{a}:{a+3}], v{self.V_XR} offset:{item*1024}", w=rl(('v', a)), xr=grp), self.rlag),
                        ('storeb', self.store(a, self.V_ST['F' if n == 0 else 'S'], 56 + s // 2), 0)])
        extra = 0
        tail = []
        g = min(jb['rdy'] for jb in jobs)
        laststore = -99
        ta_free = 0
        NT = self.NT

        def ready(jb, g):
            st, j = jb['i'], jb['j']
            if st >= 6 or jb['rdy'] > g:
                return False
            if st == 0 and j > 0 and jobs[j - 1]['i'] == 0:
                return False
            if st == 1 and j >= NT and not (jobs[j - NT]['i'] >= 6 and jobs[j - NT]['rdy'] <= g):
                return False
            if st == 0 and j >= NT + 2 and jobs[j - NT - 2]['i'] < 6:
                return False
            if st == 5 and any(jobs[q]['i'] < 5 for q in range(max(0, j - 3), j)):
                return False
            return True

        def arrive(key, g):
            S = posts[key]
            S['left'] -= 1
            S['t'] = max(S.get('t', 0), g)
            if S['left'] == 0:
                S['rdy'] = S['t']

        def take(jb, g, out):
            out.append(jb['st'][jb['i']].pop(0))
            if not jb['st'][jb['i']]:
                jb['i'] += 1
                jb['rdy'] = g + 1
                if jb['i'] == 6:
                    arrive(jb['key'], g + 1)

        def ptake(S, g, out, intail):
            kind, it, lag = S['st'].pop(0)
            out.append(it)
            lag = min(lag, 1) if intail else lag
            S['rdy'] = g + lag
            if not S['st'] and S['nxt']:
                for y in S['nxt']:
                    arrive(y, g + lag)

        def pready(kinds, g):
            return [S for S in posts.values() if S['st'] and S['st'][0][0] in kinds and S['rdy'] is not None and S['rdy'] <= g]
        lo = 0
        while any(S['st'] for S in posts.values()):
            intail = g >= NM - 1
            G = gaps[g] if not intail else dict(mem=[], v=[], used=0, excl=False)
            if G['excl']:
                g += 1
                continue
            while lo < len(jobs) and jobs[lo]['i'] >= 6:
                lo += 1
            act = jobs[lo:lo + NT + 3]
            used = G['used']
            pre, mem, v = [], [], []
            free3 = 0
            for S in pready(('bar',), g)[:1]:
                ptake(S, g, pre, intail)
                extra += 45
            if used <= 1:
                for S in pready(('dsr',), g)[:1]:
                    ptake(S, g, mem, intail); used += 1
            if used == 0:
                for S in pready(('store', 'storeb'), g)[:1]:
                    if intail or (g - laststore >= self.stsp and g > self.stmin):
                        ta_free = max(ta_free, 16 * min(g, NM) + extra) + (self.tast if S['st'][0][0] == 'store' else self.tasb)
                        ptake(S, g, mem, intail)
                        laststore = g
                        extra += 14
                        free3 = 1
            if used == 0 and not free3:
                for S in pready(('dsw',), g)[:1]:
                    ptake(S, g, mem, intail); used += 3
            cap = 3 if free3 else 2

            def cands(st):
                return [jb for jb in act if jb['i'] == st and ready(jb, g)]

            def filler(limit, allow_over, scal=False):
                nonlocal used
                while used < limit:
                    pm = pready(('perm',), g)
                    tr = cands(3) + cands(1)
                    cv = cands(5)
                    room = limit - used
                    if room >= 2 and pm:
                        ptake(pm[0], g, v, intail); used += 2
                    elif room >= 2 and tr and len(cv) < 3:
                        take(tr[0], g, v); used += 2
                    elif cv:
                        take(cv[0], g, v); used += 1
                    elif scal and (cands(2) + cands(0) + cands(4)):
                        l = cands(2) + cands(0) + cands(4)
                        jb = ([x for x in l if not x['st'][x['i']][0].get('pk')] + l)[0]
                        if jb['st'][jb['i']][0].get('pk'):
                            jb['st'][jb['i']] = list(jb['st'][jb['i']][0]['alt'])
                        take(jb, g, v); used += 1
                    elif allow_over and tr:
                        take(tr[0], g, v); used += 2
                    else:
                        break
            pk = cands(4) + cands(2) + [jb for jb in act if jb['i'] == 0 and jb['rdy'] <= g and jb['j'] < NT + 2 + lo][:fmax]
            ntr = sum(len(jb['st'][jb['i']]) for jb in cands(1) + cands(3))
            if intail:
                filler(99, True)
                for jb in pk:
                    if ready(jb, g):
                        take(jb, g, v); used += 1
                tail += pre + mem + v
                extra += 4 * used + (60 if pre or any('xr' in x for x in mem) else 0)
            else:
                if not free3 and len(pk) >= bmin and ntr <= ntrmax and (2 * ntr + used + len(cands(5)) >= 4 or len(pk) >= bmin + 3):
                    filler(5, True)
                    used = max(used, 5)
                    for jb in pk:
                        if ready(jb, g):
                            take(jb, g, v); used += 1
                else:
                    filler(cap, False, True)
                extra += 4 * max(0, used - cap)
                if commit:
                    G['pre'] += pre
                    G['mem'] += mem
                    G['v'] += v
                    G['used'] = used - free3
            g += 1
            assert g < NM + 300
        return extra, ta_free - 16 * NM, tail

    def consts(self):
        m, v, g, b = self.V_PAR
        T = self.V_T
        o = []

        def unpack(src, lo, hi):
            o.append(V(f"v_lshlrev_b32 v{lo}, 16, v{src}", [src], [lo]))
            o.append(V(f"v_and_b32 v{hi}, 0xffff0000, v{src}", [src], [hi]))

        def rnd(lo, hi):
            o.append(V(f"v_cvt_pk_bf16_f32 v{T+10}, v{lo}, v{hi}", [lo, hi], [T + 10]))
            unpack(T + 10, lo, hi)
        unpack(v, T, T + 1)
        o[0]['needvm'] = ('par',)
        o.append(V(f"v_add_f32 v{T}, 0x3727c5ac, v{T}", [T], [T]))
        o.append(V(f"v_add_f32 v{T+1}, 0x3727c5ac, v{T+1}", [T + 1], [T + 1]))
        rnd(T, T + 1)
        o.append(V(f"v_sqrt_f32 v{T}, v{T}", [T], [T], True))
        o.append(V(f"v_sqrt_f32 v{T+1}, v{T+1}", [T + 1], [T + 1], True))
        unpack(g, T + 2, T + 3)
        rnd(T, T + 1)
        o.append(V(f"v_rcp_f32 v{T}, v{T}", [T], [T], True))
        o.append(V(f"v_rcp_f32 v{T+1}, v{T+1}", [T + 1], [T + 1], True))
        unpack(m, T + 4, T + 5)
        rnd(T, T + 1)
        o.append(V(f"v_mul_f32 v{T}, v{T}, v{T+2}", [T, T + 2], [T]))
        o.append(V(f"v_mul_f32 v{T+1}, v{T+1}, v{T+3}", [T + 1, T + 3], [T + 1]))
        unpack(b, T + 6, T + 7)
        rnd(T, T + 1)
        o.append(V(f"v_fma_f32 v{T+6}, -v{T+4}, v{T}, v{T+6}", [T + 4, T, T + 6], [T + 6]))
        o.append(V(f"v_fma_f32 v{T+7}, -v{T+5}, v{T+1}, v{T+7}", [T + 5, T + 1, T + 7], [T + 7]))
        o.append(V(f"v_mul_f32 v{T}, s50, v{T}", [T], [T]))
        o.append(V(f"v_mul_f32 v{T+1}, s50, v{T+1}", [T + 1], [T + 1]))
        o.append(V(f"v_mul_f32 v{T+6}, s50, v{T+6}", [T + 6], [T + 6]))
        o.append(V(f"v_mul_f32 v{T+7}, s50, v{T+7}", [T + 7], [T + 7]))
        o.append(dict(k='ds', t=f"ds_write_b64 v{self.V_CW}, v[{T}:{T+1}]", r=[('v', T), ('v', T + 1)], w=[]))
        o.append(dict(k='ds', t=f"ds_write_b64 v{self.V_CW}, v[{T+6}:{T+7}] offset:512", r=[('v', T + 6), ('v', T + 7)], w=[]))
        return o

    def prologue(self):
        T = self.V_T
        XD = self.V_XD
        s = ""
        if self.spin == 'start' or self.enc:
            s += "s_memrealtime s[62:63]\n"
        if self.diag:
            s += "s_memtime s[60:61]\ns_memrealtime s[62:63]\n"
        s += """s_load_dwordx4 s[24:27], s[0:1], 0
s_load_dwordx8 s[12:19], s[0:1], 16
s_load_dwordx2 s[32:33], s[0:1], 48
"""
        if self.diag:
            s += "s_load_dwordx2 s[22:23], s[0:1], 64\n"
        s += f"""s_cmp_ge_u32 s2, 256
s_cbranch_scc1 L_exit
v_lshrrev_b32 v{T+2}, 6, v0
v_and_b32 v1, 63, v0
s_lshr_b32 s39, s2, 3
; every workgroup touches 16 lines of the code (32 workgroups per XCD cover 64 KiB) so that fetches hit L2
s_getpc_b64 s[8:9]
L_pc:
s_lshl_b32 s3, s39, 11
v_lshrrev_b32 v{T}, 4, v0
v_lshl_add_u32 v{T}, v{T}, 7, s3
v_min_u32 v{T}, L_last-L_pc, v{T}
v_mov_b32 v{T+1}, s9
v_add_co_u32 v{T}, vcc, s8, v{T}
v_readfirstlane_b32 s36, v{T+2}
s_and_b32 s38, s2, 7
v_addc_co_u32 v{T+1}, vcc, 0, v{T+1}, vcc
global_load_dword v{self.V_DUM+2}, v[{T}:{T+1}], off
s_and_b32 s37, s39, 3
s_lshr_b32 s3, s39, 2
s_lshl_b32 s38, s38, 3
s_add_u32 s38, s38, s3
s_mul_i32 s40, s38, 229376
s_mul_i32 s3, s36, 3584
s_lshl_b32 s20, s36, 13
s_mul_i32 s21, s36, 3072
s_sub_u32 s4, {23*896}, s3
s_movk_i32 s52, 896
s_bitcmp1_b32 s36, 1
s_cselect_b32 s3, s4, s3
s_cselect_b32 s52, -896, s52
s_add_u32 s8, s40, s3
s_add_u32 s9, s8, s52
s_add_u32 s9, s9, s52
s_sub_u32 s5, s52, 2048
{self.cov1()}; x DMA voffsets (descriptor base is biased by -4096)
v_lshrrev_b32 v{T+3}, 3, v1
v_and_b32 v{T+4}, 7, v1
v_lshrrev_b32 v{T+5}, 4, v1
v_xor_b32 v{T+6}, v{T+4}, v{T+5}
v_mul_u32_u24 v{T+7}, 14336, v{T+3}
v_lshl_add_u32 v{T+7}, v{T+6}, 4, v{T+7}
{self.cov2()}v_add_u32 v{XD[2]}, s5, v{XD[0]}
v_add_u32 v{XD[3]}, s5, v{XD[1]}
s_mul_i32 s3, s39, 42
s_mul_i32 s4, s36, 11
s_add_u32 s3, s3, s4
v_min_u32 v{T+8}, 10, v1
v_add_u32 v{T+8}, s3, v{T+8}
v_min_u32 v{T+8}, 1343, v{T+8}
v_mul_u32_u24 v{T+9}, 2341, v{T+8}
v_lshrrev_b32 v{T+9}, 20, v{T+9}
v_mul_u32_u24 v{T+9}, {401408-57344}, v{T+9}
v_lshl_add_u32 v{self.V_PF}, v{T+8}, 7, v{T+9}
"""
        if self.rot:
            s += f"s_and_b32 s90, s2, 7\ns_cmp_eq_u32 s90, 7\ns_cselect_b32 s90, 3, s90\ns_lshl_b32 s90, s90, 7\n"
        if self.q_early:
            s += self.colsetup() + self.par_addr()
        if self.pro[0] == 'w':
            s += self.prologue_w()
        if self.diag:
            s += "s_memtime s[98:99]\n"
        s += f"""s_mov_b32 s30, {WB}
s_mov_b32 s31, 0x20000
s_waitcnt lgkmcnt(0)
s_mov_b32 s28, s26
s_mov_b32 s29, s27
s_sub_u32 s24, s24, 4096
s_subb_u32 s25, s25, 0
s_mov_b32 s26, {XB+4096}
s_mov_b32 s27, 0x20000
"""
        return s

    def cov1(self):
        if not self.cov & 1:
            return ""
        return """s_add_u32 s100, s20, 4096
s_bitcmp1_b32 s37, 0
s_cselect_b32 s3, s9, s8
s_cselect_b32 s9, s8, s9
s_cselect_b32 s4, s100, s20
s_cselect_b32 s100, s20, s100
s_mov_b32 s8, s3
s_mov_b32 s20, s4
"""

    def cov2(self):
        T, XD = self.V_T, self.V_XD
        if not self.cov & 2:
            return f"""v_add_u32 v{XD[0]}, 4096, v{T+7}
v_xor_b32 v{XD[1]}, 64, v{XD[0]}
v_add_u32 v{XD[1]}, {114688-1024}, v{XD[1]}
"""
        return f"""s_bitcmp1_b32 s37, 1
s_cselect_b32 s3, 114688, 0
s_sub_u32 s4, {114688+3072}, s3
s_addk_i32 s3, 4096
v_xor_b32 v{XD[1]}, 64, v{T+7}
v_add_u32 v{XD[0]}, s3, v{T+7}
v_add_u32 v{XD[1]}, s4, v{XD[1]}
"""

    def cov3(self):
        T = self.V_T
        if not self.cov & 2:
            return ""
        return f"""s_bitcmp1_b32 s37, 1
s_cselect_b32 s5, 1088, 0
v_xor_b32 v{T+5}, s5, v{T+5}
"""

    def colsetup(self):
        return """s_lshl_b32 s6, s37, 8
s_lshr_b32 s4, s37, 1
s_mul_i32 s7, s4, 448
s_add_u32 s7, s7, 192
s_mul_i32 s4, s4, 192
s_sub_u32 s10, s6, s4
s_add_u32 s10, s10, 128
"""

    def prologue_w(self):
        T = self.V_T
        WA, WBr = self.V_WD['A'], self.V_WD['B']
        return ('' if self.q_early else self.colsetup()) + f"""s_lshl_b32 s3, s36, 2
s_and_b32 s3, s3, 4
v_and_b32 v{T+5}, 1, v{T+5}
v_lshl_add_u32 v{T+5}, v{T+5}, 1, s3
v_xor_b32 v{T+4}, v{T+4}, v{T+5}
s_mul_i32 s3, s36, 7168
v_mul_u32_u24 v{T+3}, 896, v{T+3}
v_lshl_add_u32 v{T+3}, v{T+4}, 4, v{T+3}
v_add_u32 v{T+3}, s3, v{T+3}
v_add_u32 v{WA[0]}, s6, v{T+3}
v_add_u32 v{WA[1]}, {401408-1024}, v{WA[0]}
v_add_u32 v{WA[2]}, {802816-2048}, v{WA[0]}
s_sub_u32 s11, s7, 64
v_mov_b32 v{T+5}, s10
v_mov_b32 v{T+6}, s11
v_cmp_gt_u32 vcc, 4, v{T+4}
s_mov_b32 s50, {NLOG2E:#x}
s_mov_b32 s51, s50
s_mov_b32 s34, {XB}
s_mov_b32 s35, 0x20000
v_cndmask_b32 v{T+5}, v{T+6}, v{T+5}, vcc
v_add_u32 v{WBr[0]}, v{T+5}, v{T+3}
v_add_u32 v{WBr[1]}, {401408-1024}, v{WBr[0]}
v_add_u32 v{WBr[2]}, {802816-2048}, v{WBr[0]}
"""

    def prologue2(self):
        T = self.V_T
        RA, RB, XA, XH = self.V_RA, self.V_RB, self.V_XA, self.V_XH
        s = f"""; s3 = nu, s4 = mu, s5 = tap step (+-1024)
s_and_b32 s3, s36, 1
s_lshr_b32 s4, s36, 1
s_lshl_b32 s5, s4, 11
s_sub_u32 s5, 1024, s5
v_lshrrev_b32 v{T}, 4, v1
v_bfe_u32 v{T+1}, v1, 2, 2
v_mul_u32_u24 v{T+2}, 3072, v{T}
v_and_b32 v{T+3}, 3, v1
v_lshl_add_u32 v{T+2}, v{T+1}, 7, v{T+2}
v_lshl_add_u32 v{T+2}, v{T+3}, 3, v{T+2}
v_bfe_u32 v{T+4}, v1, 3, 2
v_lshl_add_u32 v{T+2}, v{T+4}, 5, v{T+2}
v_add_u32 v{T+2}, {self.W0 + 1024}, v{T+2}
s_lshl_b32 s11, s3, 6
v_xor_b32 v{RA+1}, s11, v{T+2}
v_xor_b32 v{RA+4}, 32, v{RA+1}
s_lshl_b32 s54, s3, 5
v_xor_b32 v{RB+1}, s54, v{T+2}
v_xor_b32 v{RB+4}, 64, v{RB+1}
"""
        for b in (RA, RA + 3, RB, RB + 3):
            s += f"v_subrev_u32 v{b}, s5, v{b+1}\nv_add_u32 v{b+2}, s5, v{b+1}\n"
        for q in range(6):
            s += f"v_subrev_u32 v{RB+6+q}, 65536, v{RB+q}\n"
        s += f"""; x LDS read addresses
v_and_b32 v{T+1}, 15, v1
v_lshrrev_b32 v{T+2}, 1, v{T+1}
v_xor_b32 v{T+4}, v{T+2}, v{T}
v_lshlrev_b32 v{T+5}, 7, v{T+1}
v_lshl_add_u32 v{T+5}, v{T+4}, 4, v{T+5}
{self.cov3()}s_lshl_b32 s5, s4, 14
v_add_u32 v{XA[0]}, s5, v{T+5}
s_sub_u32 s5, {15*2048}, s5
v_add_u32 v{XH[0]}, s5, v{T+5}
v_xor_b32 v{XA[1]}, 64, v{XA[0]}
v_xor_b32 v{XH[1]}, 64, v{XH[0]}
v_add_u32 v{XA[2]}, 65536, v{XA[0]}
v_add_u32 v{XA[3]}, 65536, v{XA[1]}
v_add_u32 v{XH[2]}, 65536, v{XH[0]}
v_add_u32 v{XH[3]}, 65536, v{XH[1]}
s_mul_i32 s5, s4, {15*896}
s_add_u32 s40, s40, s5
"""
        for q in range(1, 8):
            s += f"s_add_u32 s{40+q}, s{39+q}, s52\n"
        s += "s_cmp_eq_u32 s3, 0\n"
        for q in range(4):
            s += f"s_cselect_b32 s{56+q}, s{40+2*q}, s{41+2*q}\n"
        s += f"""; A store offset
v_mul_u32_u24 v{T+5}, 14336, v{T+1}
v_lshrrev_b32 v{T+6}, 1, v{T}
v_lshl_add_u32 v{T+5}, v{T+6}, 4, v{T+5}
v_and_b32 v{T+7}, 1, v{T}
v_lshl_add_u32 v{T+5}, v{T+7}, 5, v{T+5}
s_add_u32 s5, s6, s11
v_add_u32 v{self.V_ST['A']}, s5, v{T+5}
s_lshl_b32 s5, s3, 1
v_or_b32 v{T+6}, s5, v{T+6}
v_and_b32 v{T+2}, 3, v{T+2}
v_xor_b32 v{T+6}, v{T+6}, v{T+2}
v_lshlrev_b32 v{T+5}, 6, v{T+1}
v_lshl_add_u32 v{T+5}, v{T+6}, 4, v{T+5}
v_lshl_add_u32 v{T+5}, v{T+7}, 3, v{T+5}
s_mul_i32 s5, s4, 12288
s_add_u32 s5, s5, {self.STG}
v_add_u32 v{self.V_XW}, s5, v{T+5}
; exchange read address and B store offsets
v_lshrrev_b32 v{T+5}, 2, v1
v_bfe_u32 v{T+6}, v1, 3, 2
v_xor_b32 v{T+6}, v{T+6}, v{T+3}
v_lshlrev_b32 v{T+7}, 6, v{T+5}
v_lshl_add_u32 v{T+7}, v{T+6}, 4, v{T+7}
s_lshl_b32 s4, s3, 10
s_add_u32 s5, s5, s4
v_add_u32 v{self.V_XR}, s5, v{T+7}
v_mul_u32_u24 v{T+5}, 14336, v{T+5}
v_lshl_add_u32 v{T+5}, v{T+3}, 4, v{T+5}
v_add_u32 v{self.V_ST['F']}, s10, v{T+5}
v_add_u32 v{self.V_ST['S']}, s7, v{T+5}
; constants
v_lshlrev_b32 v{T+5}, 4, v{T}
v_add_u32 v{T+5}, {self.CONST}, v{T+5}
s_lshl_b32 s4, s3, 7
v_add_u32 v{self.V_CA['A']}, s4, v{T+5}
s_add_u32 s4, s11, 256
v_add_u32 v{self.V_CA['B']}, s4, v{T+5}
v_lshlrev_b32 v{self.V_CW}, 3, v1
v_add_u32 v{self.V_CW}, {self.CONST}, v{self.V_CW}
"""
        if not self.q_early:
            s += self.par_addr()
        if self.rot:
            for c in range(1, 7):
                s += f"s_add_u32 s{90+c}, s{89+c}, 128\ns_cmp_eq_u32 s{90+c}, 896\ns_cselect_b32 s{90+c}, 0, s{90+c}\n"
        return s

    def par_addr(self):
        T = self.V_T + 12
        return f"""s_sub_u32 s4, s10, 128
s_sub_u32 s5, s7, 192
v_mov_b32 v{T}, s6
v_mov_b32 v{T+1}, s4
v_cmp_gt_u32 vcc, 32, v1
v_mov_b32 v{T+2}, s5
s_nop 0
v_cndmask_b32 v{T}, v{T+1}, v{T}, vcc
v_cmp_gt_u32 vcc, 48, v1
s_nop 1
v_cndmask_b32 v{T}, v{T+2}, v{T}, vcc
v_lshl_add_u32 v{T}, v1, 2, v{T}
"""

    def par_loads(self):
        T = self.V_T + 12
        return [dict(k='vmem', t=f"global_load_dword v{self.V_PAR[q]}, v{T}, s[{12+2*q}:{13+2*q}]", tag=('par',)) for q in range(4)]

    def build(self, par):
        self.par = par
        self.sval = {}
        self.nstamp = 0
        self.stampnames = []
        L, P, PA, LEAD, NX, NW, NS = self.L, self.P, self.PA, self.LEAD, self.NX, self.NW, self.NS
        nb = (14 - L) // 2
        assert L % 2 == 0 and P <= L
        units = []
        for t in range(14):
            units.append(('A', t))
            if t < 2 * nb:
                units.append(('B', t))
        lag = list(range(2 * nb, 14))
        nre = max(0, len(lag) - NS)
        reread = self.reread if self.reread is not None else lag[len(lag) - 2 - nre:len(lag) - 2]
        order2 = [12, 13] + sorted(reread) + [t for t in lag[:-2] if t not in reread]
        if self.order:
            units = [(x[0], int(x[1:])) for x in self.order if x[0] in 'AB']
            to2 = [int(x[1:]) for x in self.order if x[0] == 'T']
            P = len(to2)
        else:
            to2 = order2[L - P:]
            units += [('B', t) for t in order2[:L - P]]
        NU = len(units)
        assert sorted(units + [('B', t) for t in to2]) == sorted((g_, t) for g_ in 'AB' for t in range(14))
        kA = units.index(('A', 14 - PA))
        assert units[kA:kA + PA] == [('A', t) for t in range(14 - PA, 14)]
        upos = {u: k for k, u in enumerate(units)}
        ufirst = dict(upos)
        ulast = dict(upos)
        for t in range(14 - PA, 14):
            ufirst[('A', t)] = kA
            ulast[('A', t)] = kA + PA - 1
        for t in to2:
            upos[('B', t)] = ufirst[('B', t)] = ulast[('B', t)] = NU
        inst = []
        for t in range(14):
            if t in reread:
                inst += [(ufirst[('A', t)], ulast[('A', t)], (t, 1)), (upos[('B', t)], upos[('B', t)], (t, 2))]
            else:
                inst.append((ufirst[('A', t)], upos[('B', t)], (t, 1)))
        inst.sort()
        busy = [-9] * NS
        xset = {}
        for a_, b_, key in inst:
            q = min(range(NS), key=lambda i: busy[i])
            assert busy[q] < a_, ("x register sets exhausted", key)
            busy[q] = b_
            xset[key] = q

        def xinst(g, t):
            return (t, 2) if (g == 'B' and t in reread) else (t, 1)

        def xreg(g, t, i):
            return ('a', xset[xinst(g, t)] * XS + i * 4)
        ring = [('a', r) for r in range(NS * XS, 256, 4)] + [('v', r) for r in self.V_FREE]
        NF = len(ring)
        self.wslot = {}
        mf = []
        frags = {}
        xuse = {}
        unit_first = {}
        seen = set()
        tile_end = {}
        lastuse = {}

        def add(g, t, n, s, tap, reg):
            i = s + tap - 1
            if i < 0:
                return
            first = (g, n, s) not in seen
            seen.add((g, n, s))
            xuse.setdefault((xinst(g, t), i), [len(mf), 0])[1] = len(mf)
            frags.setdefault((g, t, n, tap), dict(first=len(mf), reg=reg))['last'] = len(mf)
            lastuse[reg] = lastuse[xreg(g, t, i)] = len(mf)
            mf.append(self.mfma(g, n, s, reg, xreg(g, t, i), first))
            tile_end[(g, n, s)] = len(mf) - 1
        for k, (g, t) in enumerate(units):
            if kA < k < kA + PA:
                unit_first[(g, t)] = unit_first[units[kA]] + 46 * (k - kA)
                continue
            unit_first[(g, t)] = len(mf)
            if k == kA:
                for s in range(8):
                    for n in range(2):
                        for q in range(PA):
                            for tap in range(3):
                                add(g, t + q, n, s, tap, ring[(6 * k + (n * PA + q) * 3 + tap) % NF])
            else:
                for n in range(2):
                    for s in self.rows(g, n):
                        for tap in range(3):
                            add(g, t, n, s, tap, ring[(6 * k + n * 3 + tap) % NF])
        M2 = len(mf)
        keep = {xreg('B', t, i) for t in to2 for i in range(9)}
        pool = sorted((lu, r) for r, lu in lastuse.items() if r not in keep)
        assert len(pool) >= 6 * P, (len(pool), P)
        for n in range(2):
            for s in self.rows('B', n):
                for q, t in enumerate(to2):
                    for tap in range(3):
                        add('B', t, n, s, tap, pool[(n * P + q) * 3 + tap][1])
        NM = len(mf)
        assert NM == 14 * (80 + par)
        XL = self.XL
        bpos = [unit_first[u] - (self.blead[k - 1] if 1 <= k <= len(self.blead) else LEAD + XL) - 1 for k, u in enumerate(units)]
        bpos[kA] -= 3 * (PA - 1) * 2
        if PA > 1 and self.early:
            bpos[kA + 1] = unit_first[units[kA]] + self.kz
        need = [[] for u in units]
        for u in units:
            need[ufirst[u]].append(('w',) + u)
        xbar = {}
        for c in range(7):
            xbar[c] = ufirst[('A', 2 * c)]
            need[xbar[c]].append(('x', c))
        bpos.append(M2 - LEAD - XL - 1 - 3 * P)
        assert bpos == sorted(bpos)
        need.append([('w', 'B', t) for t in to2])
        bpos.append(M2)
        need.append([])
        nbar = len(bpos)
        pro = self.pro.split(',')
        sched = {p: [] for p in range(-1, nbar)}
        relbar = set()
        xrel = {}
        for c in range(7):
            xrel[c] = max(min(upos[('B', t)] + 2, NU + 1) if t in reread else (ufirst if self.early else ulast)[('A', t)] + 1 for t in (2 * c, 2 * c + 1))
        pp = -1
        for c in range(7):
            if f'x{c}1' in pro:
                p = -1
            else:
                p = max(xrel[c - NX] if c >= NX else 0, xbar[c] - self.xahead, pp + 1)
                if self.xsched:
                    p = self.xsched[c]
                if c >= NX:
                    relbar.add(p)
            assert p < xbar[c]
            pp = p
            sched[p].append(('x', c))
        stg_rel = max(xrel[c] for c in range(7 - NX, 7) if self.xb(c) == 0)
        assert stg_rel < nbar
        relbar.add(max(stg_rel, NU))
        slots = [[-1, self.W0 + i * WSLOT] for i in range(NW)]
        for i in range(5):
            a_ = self.W0 - 65536 + i * WSLOT
            av = max(xrel[c] for c in range(7 - NX, 7) if self.xb(c) * XBUF < a_ + WSLOT and a_ < (self.xb(c) + 1) * XBUF)
            slots.append([av, a_])
        pp = -1
        for k, u in enumerate(units + [('B', t) for t in to2]):
            sl = min(slots if u[0] == 'B' else slots[:NW], key=lambda x: x[0])
            p = max(sl[0], 0, pp)
            if k < NW:
                p = max(p, k - self.wahead)
            if self.dmaeven and p % 2 == self.dmaeven % 2 and p + 2 < ufirst[u] + 1 and k < self.dmaeven_until:
                p += 1
            if f'w{k}' in pro:
                p = -1
            else:
                relbar.add(p)
            assert p < ufirst[u], (k, u, p)
            pp = p
            self.wslot[u] = sl[1]
            sl[0] = (kA + 1 if (self.early and PA > 1 and kA <= k < kA + PA) else ufirst[u] + 2) if k < NU else 999
            sched[p].append(('w', u))
        self.sched = sched
        self.units = units

        seq = self.stamp('p0')
        donew = done2 = False
        for q, tok in enumerate(pro):
            if tok[0] == 'w' and not donew:
                if q > 0:
                    seq.append(dict(k='raw', t=self.prologue_w()))
                donew = True
            if tok[0] == 'p':
                seq += self.pf_w(int(tok[1]))
            elif tok[0] == 'x':
                seq += self.dma_x(int(tok[1]), (int(tok[2]),))
            elif tok[0] == 'w':
                seq += self.dma_w(*units[int(tok[1:])])
            elif tok == 'q':
                seq += self.par_loads()
            elif tok == 'C':
                assert done2
                seq.append(dict(k='vmwait', t='', tag=('par',)))
                seq += self.consts()
            elif tok == 'S':
                assert donew
                seq.append(dict(k='raw', t=self.prologue2()))
                done2 = True
        assert done2
        seq += self.stamp('p2')
        seq.append(dict(k='raw', t="@HOP@"))

        gaps = {g: dict(pre=[], z=[], mem=[], v=[], used=0, excl=False) for g in range(-1, NM)}
        g = self.first
        lastl = -1
        pfdone = set()
        issue_end = {}
        for p in range(0, nbar):
            l = sched[p]
            g = max(g, bpos[p] + 3)
            ws_, xs_ = [x for x in l if x[0] == 'w'], [x for x in l if x[0] == 'x']
            nw_ = self.xfirst.get(p, 99)
            for kind, arg in ws_[:nw_] + xs_ + ws_[nw_:] + ([('par', 0)] if p == self.parbar and not self.q_early else []):
                if kind == 'x':
                    cs = [c_ for c_ in range(7) if f'p{c_}' not in pro and c_ not in pfdone and c_ <= arg + self.pfmode // 2]
                    pfdone |= set(cs)
                    pf = [y for c_ in cs for y in self.pf_w(c_)]
                    items = self.dma_x(arg, [hf for hf in (0, 1) if f'x{arg}{hf}' not in pro])
                    items = items + pf if self.pfmode % 2 else pf + items
                    sp = self.xsp
                elif kind == 'w':
                    items = self.dma_w(*arg)
                    sp = self.wsp
                else:
                    items = self.par_loads()
                    sp = 2
                pend = []
                for it in items:
                    if it['k'] == 'vmem':
                        g = max(g, lastl + 1 + len([x for x in pend if x['k'] != 'none']))
                        gaps[g]['mem'].append(it)
                        gaps[g]['used'] = 2
                        gaps[g]['excl'] = True
                        q = g - 1
                        for x in reversed(pend):
                            gaps[q]['z'].insert(0, x)
                            if x['k'] == 'salu8':
                                gaps[q]['used'] += 1
                            if x['k'] != 'none':
                                q -= 1
                        pend = []
                        issue_end[it['tag']] = g
                        lastl = g
                        g += sp
                    else:
                        pend.append(it)
        self.stmin = lastl if self.stdelay else 0
        vis = {}
        self.kept = []
        for p in range(nbar):
            mine = [tg for tg in need[p] if tg not in vis]
            if mine or p in relbar:
                mine += [tg for q in range(p + 1, nbar) for tg in need[q] if tg not in vis and issue_end.get(tg, 0) + self.safe <= bpos[p]]
                for tg in mine:
                    vis[tg] = max(bpos[p], -1)
                gaps[max(bpos[p], -1)]['pre'].append(dict(k='bar', need=mine, idx=p))
                self.kept.append(p)
            gaps[max(bpos[p], -1)]['pre'] += self.stamp(f'B{p:02d}')
        allr = []
        for (g, t, n, tap), f in frags.items():
            allr.append((f['first'], f['last'], f['reg'], [self.rd_w(g, t, n, tap, h, f['reg']) for h in range(2)], ('w', g, t)))
        for ((t, ph), i), (a, b) in xuse.items():
            d = ('a', xset[(t, ph)] * XS + i * 4)
            if ph == 2 and t in to2:
                a = min(a, M2 + i)
            if ph == 1 and t >= 14 - PA:
                a = min(a, unit_first[units[kA]] + 10 + 2 * i + (16 if t > 14 - PA else 0))
            allr.append((a, b, d, [self.rd_x(t, i, d)], ('x', t // 2)))
        allr.sort(key=lambda x: x[0])
        reads = []
        prev_last = {}
        for a, b, reg, items, tg in allr:
            e = max(vis[tg], prev_last.get(reg, -1))
            prev_last[reg] = b
            for it in items:
                reads.append([a - LEAD, e, it, a])
        nxt = 10 ** 9
        E0 = min(tile_end.values())
        cnt = 0
        for r in reversed(reads):
            if self.dspair and nxt < 10 ** 9 and nxt >= E0 and cnt == 1 and gaps[nxt]['used'] == 0 and r[0] + 6 >= nxt:
                r[0] = nxt
                cnt = 2
                continue
            cnt = 1
            q = min(r[0], nxt - (2 if (self.dspair and nxt >= E0) else 1))
            while q >= 0 and gaps[q]['excl']:
                q -= 1
            r[0] = nxt = q
        cur = -1
        self.minlead = 999
        for tg, e, it, a in reads:
            g = max(tg, e, cur)
            if g < 0 and a >= self.nfirst:
                g = 0
            while g >= 0 and (gaps[g]['excl'] or gaps[g]['used'] >= 2):
                g += 1
            cur = g
            if a > 40:
                self.minlead = min(self.minlead, a - g)
            assert g < a, (g, a, it)
            gaps[g]['mem'].append(it)
            gaps[g]['used'] += 1

        def fill(items, g):
            for it in items:
                g += 1
                while gaps[g]['used'] > 0:
                    g += 1
                gaps[g]['mem' if it['k'] == 'ds' else 'v'].append(it)
                gaps[g]['used'] = 3 if (it['k'] == 'ds' and it.get('r')) else 2
            return g
        g = fill(self.consts(), bpos[self.parbar + 4] + 1) if 'C' not in pro else 0
        assert g < E0 - 90
        g = fill(self.const_reads(), E0 - 90)
        assert g < E0 - 8
        tiles = [('A', n, s) for s in range(8) for n in range(2)] + [('B', n, s) for n in range(2) for s in self.rows('B', n)]
        best = None
        for ep in ([tuple(self.ep)] if self.ep else [(b, n_, f) for b in range(3, 11) for n_ in (2, 3) for f in (2, 3, 4, 5)]):
            ex, fin, tl = self.epi_schedule(gaps, tiles, tile_end, NM, ep, False)
            if best is None or fin < best[0]:
                best = (fin, ep)
        ex, fin, tail = self.epi_schedule(gaps, tiles, tile_end, NM, best[1], True)
        gaps[tile_end[('A', 1, 7)]]['pre'] += self.stamp('Aend')
        gaps[M2 - 1]['pre'] += self.stamp('M2')
        acc_ = 0
        estseg = []
        for q in range(NM):
            if any(x['k'] == 'smem' for x in gaps[q]['pre']):
                estseg.append(acc_); acc_ = 0
            acc_ += 16 + 4 * max(0, gaps[q]['used'] - 2)
        estseg.append(acc_)
        waste = sum(max(0, 2 - gaps[q]['used']) for q in range(E0 + 3, NM - 1))
        for g in range(-1, NM):
            if g >= 0:
                seq.append(mf[g])
            G = gaps[g]
            seq += G['pre'] + G['z'] + G['mem'] + G['v']
        seq += self.stamp('mfend') + tail + self.stamp('tail')
        out = self.finalize(seq)
        self.info.append(f"par {par}: NM {NM} E0 {E0} M2 {M2} est {16*NM+ex} fin {16*NM+fin} ep {best[1]} waste {waste} tail {len(tail)} minlead {self.minlead} "
                         f"waits {self.nwait} nops {self.nnop} NF {NF} barriers {len(self.kept)} estseg {estseg}")
        return out

    def finalize(self, seq):
        out = []
        lds_ops, lds_reg = [], []
        lds_done = bar_done = 0
        pend = {}
        vm_ops = [('warm',)]
        vm_done = 0
        landed = set()
        nm = 0
        hist = []
        xw_idx = {}
        xw_ok = set()

        def emit(it):
            out.append(it)
            n = len([l for l in it['t'].split('\n') if l.strip() and not l.strip().startswith(';')])
            for _ in range(n - 1):
                hist.append(dict(k='x'))
            hist.append(it)

        def dist_since(pred):
            d = 0
            for h in reversed(hist):
                if pred(h):
                    return d
                d += h.get('states', 1)
                if d > 24:
                    break
            return 99

        def war(a, b, it):
            for i, rg in enumerate(lds_reg):
                if rg and rg[0] < b and a < rg[1]:
                    assert i < bar_done, ("WAR on LDS region", it, i, bar_done)
        nwait = nnop = 0
        cur_m0 = None
        cur_so = {}
        owner = []
        for it in seq:
            k = it['k']
            if k == 'smem':
                kk = self.nstamp
                self.nstamp += 1
                assert kk < (13 if self.rot else 17)
                it['t'] = f"s_memtime s[{64+2*kk}:{65+2*kk}]"
                self.stampnames.append(it['name'])
            if it.get('store') and self.nostore:
                continue
            if k == 'vmwait':
                last = max(i for i, x in enumerate(vm_ops) if x == it['tag'])
                emit(dict(k='wait', t=f"s_waitcnt vmcnt({len(vm_ops) - last - 1})"))
                vm_done = max(vm_done, last + 1)
                continue
            if k == 'bar':
                last = -1
                for tg in it['need']:
                    idxs = [i for i, x in enumerate(vm_ops) if x == tg]
                    assert len(idxs) == (8 if tg[0] == 'x' else 3), ("barrier needs un-issued group", tg, it['idx'])
                    last = max(last, idxs[-1])
                wt = ""
                if last + 1 > vm_done:
                    N = len(vm_ops) - (last + 1)
                    assert N <= 63
                    wt += f" vmcnt({N})"
                    vm_done = last + 1
                j = lds_done
                while j < len(lds_ops) and lds_ops[j] <= nm - 10:
                    j += 1
                if 'xw' in it:
                    assert len(xw_idx[it['xw']]) == 2 * self.xgrp[it['xw']]
                    j = max(j, max(xw_idx[it['xw']]) + 1, len(lds_ops) - 15)
                    xw_ok.add(it['xw'])
                if j > lds_done and len(lds_ops) - j <= 15:
                    wt += f" lgkmcnt({len(lds_ops) - j})"
                    lds_done = j
                if wt:
                    emit(dict(k='wait', t="s_waitcnt" + wt))
                if not ('xw' in it and 'b' in self.skip):
                    emit(dict(k='salu', t="s_barrier"))
                bar_done = lds_done
                full = {}
                for i, x in enumerate(vm_ops):
                    full[x] = full.get(x, True) and i < vm_done
                landed = {x for x, f in full.items() if f}
                continue
            if it.get('m0'):
                cur_m0 = it['m0']
            if it.get('sow'):
                cur_so[it['sow'][0]] = it['sow']
            if k == 'none':
                continue
            if it.get('so'):
                assert cur_so[it['so'][0]] == it['so'], (cur_so, it)
            if it.get('dma') or it.get('wregion'):
                if it.get('dma'):
                    assert cur_m0 == it['dma'], (cur_m0, it)
                a, b = it.get('wregion') or it['region']
                war(a, b, it)
                owner = [(rg, tg) for rg, tg in owner if not (rg[0] < b and a < rg[1])] + [((a, b), it.get('tag'))]
            if 'xw' in it:
                xw_idx.setdefault(it['xw'], []).append(len(lds_ops))
            if 'xw' in it and 'w' in self.skip:
                it['t'] = f"ds_read_b64 v[2:3], v{self.V_XW}"
            if 'xr' in it:
                assert it['xr'] in xw_ok
            if 'need' in it:
                assert it['need'] in landed, ("read before landed", it)
                assert (it['region'], it['need']) in owner, ("region overwritten", it)
            if 'needvm' in it:
                assert max(i for i, x in enumerate(vm_ops) if x == it['needvm']) < vm_done
            need = -1
            for r in it.get('r', []) + (it.get('w', []) if k != 'ds' else []):
                if r in pend and pend[r] >= lds_done:
                    need = max(need, pend[r])
            if need >= 0:
                j = need
                while j + 1 < len(lds_ops) and lds_ops[j + 1] <= nm - 9:
                    j += 1
                N = min(len(lds_ops) - (j + 1), 15)
                emit(dict(k='wait', t=f"s_waitcnt lgkmcnt({N})"))
                nwait += 1
                lds_done = len(lds_ops) - N
            rs = set(it.get('r', [])); ws = set(it.get('w', []))
            pad = 0
            if k in ('valu', 'trans', 'vmem', 'ds'):
                pad = max(pad, 8 - dist_since(lambda h: h['k'] == 'mfma' and (set(h['w']) & (rs | ws))))
            if k == 'valu':
                pad = max(pad, 1 - dist_since(lambda h: h['k'] == 'trans' and (set(h['w']) & rs)))
            if it.get('perm'):
                pad = max(pad, 2 - dist_since(lambda h: h['k'] in ('valu', 'trans') and (set(h['w']) & rs)))
            if k in ('valu', 'trans', 'ds'):
                pad = max(pad, 2 - dist_since(lambda h: h.get('store') and (set(h['r']) & ws)))
            if it.get('dma'):
                pad = max(pad, 1 - dist_since(lambda h: h.get('m0')))
            if pad > 0:
                emit(dict(k='nop', t=f"s_nop {pad-1}", states=pad))
                nnop += 1
            emit(it)
            if k == 'ds':
                for r in it.get('w', []):
                    pend[r] = len(lds_ops)
                lds_ops.append(nm)
                lds_reg.append(it.get('region'))
            if k == 'vmem':
                vm_ops.append(it['tag'])
            if k == 'mfma':
                nm += 1
        self.nwait, self.nnop = nwait, nnop
        return '\n'.join(x['t'].rstrip('\n') for x in out) + '\n'

    def ending(self):
        s = ""
        if self.twice:
            s += "s_waitcnt vmcnt(0) lgkmcnt(0)\ns_barrier\ns_add_u32 s101, s101, 1\ns_cmp_eq_u32 s101, 1\ns_cbranch_scc1 L_again\n"
        if self.diag:
            s += "s_waitcnt vmcnt(0)\ns_memtime s[56:57]\ns_memrealtime s[58:59]\ns_waitcnt lgkmcnt(0)\n"
            s += "v_mov_b32 v2, 0\nv_mov_b32 v3, 0\n"
            for k in range(self.nstamp):
                s += f"s_sub_u32 s{64+2*k}, s{64+2*k}, s60\nv_writelane_b32 v2, s{64+2*k}, {k}\n"
            s += f"s_sub_u32 s56, s56, s60\nv_writelane_b32 v2, s56, {self.nstamp}\ns_sub_u32 s98, s98, s60\nv_writelane_b32 v3, s98, 61\nv_writelane_b32 v3, s58, 62\nv_writelane_b32 v3, s62, 63\n"
            s += """s_mov_b32 s24, s22
s_mov_b32 s25, s23
s_mov_b32 s26, 0x1000000
s_mov_b32 s27, 0x20000
v_lshlrev_b32 v4, 3, v0
s_lshl_b32 s3, s2, 11
buffer_store_dwordx2 v[2:3], v4, s[24:27], s3 offen
"""
        if self.enc:
            a, b, kind, sg = self.enc.split(':')
            s += "s_waitcnt vmcnt(0)\n" + ''.join(x['t'] + '\n' for x in self.stamp('end')) + "s_waitcnt lgkmcnt(0)\ns_sub_u32 s66, s66, s64\n"
            if kind == 'cyc':
                s += "s_lshr_b32 s66, s66, 3\n"
            s += ("s_add_u32 s66, 4000, s66\n" if sg == '+' else "s_sub_u32 s66, 6000, s66\n") + "s_min_u32 s66, s66, 20000\n"
            s += "s_memrealtime s[58:59]\ns_waitcnt lgkmcnt(0)\ns_sub_u32 s58, s58, s62\ns_cmp_lt_u32 s58, s66\ns_cbranch_scc1 -6\n"
        if self.spin:
            s += "s_waitcnt vmcnt(0)\n"
            if self.spin == 'end':
                s += "s_memrealtime s[62:63]\n"
            s += "s_waitcnt lgkmcnt(0)\ns_memrealtime s[58:59]\ns_waitcnt lgkmcnt(0)\ns_sub_u32 s58, s58, s62\ns_cmp_lt_u32 s58, 4000\ns_cbranch_scc1 -7\n"
        return s + "s_endpgm\n"

    def padded(self, body, par):
        import subprocess, re
        open('pad.s', 'w').write('.amdgcn_target "amdgcn-amd-amdhsa--gfx950"\n.text\nL_again:\ns_mov_b64 exec, -1\n' + body)
        subprocess.run(["clang", "-x", "assembler", "-target", "amdgcn-amd-amdhsa", "-mcpu=gfx950", "-c", "pad.s", "-o", "pad.o"], check=True)
        dis = subprocess.run(["llvm-objdump", "-d", "--mcpu=gfx950", "pad.o"], capture_output=True, text=True).stdout
        addrs = [int(m.group(1), 16) for m in re.finditer(r"// ([0-9A-F]{12}):", dis)][1:]
        lines = [l for l in body.split('\n') if l.strip()]
        assert len(lines) == len(addrs), (len(lines), len(addrs))
        ins = {}
        page = 1
        while True:
            sh = 4 * (page - 1)
            c = [k for k in range(len(lines)) if page * 4096 <= addrs[k] + sh < page * 4096 + 56]
            if not c:
                break
            good = [k for k in c if lines[k - 1].startswith('v_mfma') and not lines[k].startswith(('s_', 'buffer'))]
            ins[(good + c)[0]] = page
            page += 1
        npad = page - 1
        assert npad >= 4
        out = [".p2align 12", f"L_body{par}:", "s_mov_b64 exec, -1"]
        for i, l in enumerate(lines):
            if i in ins:
                p = ins[i]
                out.append(f"L_pad{par}_{p}:")
                out.append(f"s_cbranch_execz {'L_pad%d_%d' % (par, p + 4) if p + 4 <= npad else 'L_body%d' % par}")
            out.append(l)
        return '\n'.join(out) + '\n'

    def text(self):
        self.info = []
        parts = [self.build(par).split("@HOP@\n") for par in range(2)]
        assert parts[0][0] == parts[1][0]
        s = header(256, 256, self.LDS)
        if self.twice:
            s += "s_mov_b32 s101, 0\nL_again:\n"
        s += self.prologue() + parts[0][0]
        s += "; visit the first line of every code page once (EXEC = 0, branches only) while the first tiles are in flight\n"
        s += "s_mov_b64 exec, 0\ns_bitcmp1_b32 s37, 0\ns_cbranch_scc1 L_hop1\n"
        for par in range(2):
            if par:
                s += "L_hop1:\n"
            for w in range(3):
                s += f"s_cmp_eq_u32 s36, {w}\ns_cbranch_scc1 L_pad{par}_{w+1}\n"
            s += f"s_branch L_pad{par}_4\n"
        s += "L_exit:\ns_endpgm\n"
        for par in range(2):
            b = self.padded(parts[par][1] + self.ending(), par)
            if par:
                b = b[:-len("s_endpgm\n")] + "L_last:\ns_endpgm\n"
            s += b
        s += footer(512, 102, 256)
        return s


def parse(args):
    o = {}
    for a in args:
        k, v = a.split('=', 1)
        if k in ('sel', 'order'):
            v = v.split(',')
        elif k == 'xfirst':
            v = {int(q.split(':')[0]): int(q.split(':')[1]) for q in v.split(',')}
        elif k in ('xsched', 'blead', 'reread', 'ep', 'xgrp'):
            v = [int(q) for q in v.split(',')]
        else:
            try:
                v = int(v)
            except ValueError:
                v = v.replace('_', ' ')
        o[k] = v
    return o


if __name__ == '__main__':
    g = Gen(**parse(sys.argv[2:]))
    t = g.text()
    open(sys.argv[1], 'w').write(t)
    print(sys.argv[1], "bytes", len(t), "stamps", g.stampnames)
    for l in g.info:
        print("   ", l)
    if 'verbose' in g.__dict__:
        for p in sorted(g.sched):
            print(p, g.units[p:p + 1] if p >= 0 else '', g.sched[p], 'kept' if p in g.kept else '')
```

```python
import sys
sys.path.insert(0, 'tools')
from common import *

NLOG2E = 0xbfb8aa3b
WSLOT = 12288
XBUF = 32768
XS = 36


def V(t, r, w, tr=False, **kw):
    d = dict(k='trans' if tr else 'valu', t=t, r=[('v', x) for x in r], w=[('v', x) for x in w])
    d.update(kw)
    return d


def rn(r, n=4, o=0):
    return f"{r[0]}[{r[1]+o}:{r[1]+o+n-1}]"


def rl(r, n=4, o=0):
    return [(r[0], r[1] + o + q) for q in range(n)]


class Gen:
    def __init__(self, **o):
        d = dict(L=6, P=5, PA=2, LEAD=26, XL=6, NS=6, NX=3, NW=5, diag=False, sel=None, nostore=False, pol='sc0 sc1', xpol='nt',
                 wpol='', pfpol='', xsp=4, wsp=4, wahead=3, xahead=4, xsched=None, twice=0, parbar=3,
                 pro='p0,x00,x01,w0,S,H,w1,w2,w3', blead=(20, 28, 20, 28), dmaeven=1, dmaeven_until=21, pfmode=0, first=3, nfirst=5,
                 reread=None, order=None, xrot=1, safe=90, NT=8, dspair=1, stsp=14, tast=260, tasb=70, ep=None, xlag=7, rlag=9, stdelay=1, skip='', early=1, kz=16, xfirst={}, cov=3, wfast=0, pxs={}, pxpol='nt', nplain=0, safe1p=(2, 6, 10, 14), cls=1, snake=1, safe1=None, pfpoln=7, smem=0, warmpol='', enc=None, spin=None, rot=0, xgrp=(2, 2, 1, 1))
        d.update(o)
        self.__dict__.update(d)
        self.W0 = self.NX * XBUF
        self.CONST = self.W0 + self.NW * WSLOT
        self.LDS = self.CONST + 1024
        self.STG = 0
        assert self.LDS <= 163840
        self.w_early = [x[0] for x in self.pro.split(',') if x[0] in 'wx'][0] == 'w'
        self.q_early = 'q' in self.pro.split(',')

    V_DUM = 2
    V_XD = (6, 7, 8, 9)
    V_WD = {'A': (10, 11, 12), 'B': (13, 14, 15)}
    V_RA = 16
    V_RB = 22
    V_XA = (34, 35, 36, 37)
    V_XH = (38, 39, 40, 41)
    V_ST = {'A': 42, 'F': 43, 'S': 44}
    V_XW, V_XR = 45, 46
    V_CA = {'A': 47, 'B': 48}
    V_CW, V_PF, V_PX = 49, 50, 51
    V_C = 52
    V_PAR = (52, 53, 54, 55)
    V_T = 56
    V_ET = 84
    V_FREE = list(range(100, 144, 4))
    V_ACC = 144

    def srows(self, n):
        return list(range(8)) if n == 0 else list(range(4 * self.par, 4 * self.par + 4))

    def rows(self, g, n):
        return list(range(8)) if g == 'A' else self.srows(n)

    def acc(self, g, n, s):
        if g == 'A':
            return self.V_ACC + (s * 2 + n) * 4
        return self.V_ACC + 64 + (s if n == 0 else 8 + s % 4) * 4

    def stamp(self, name=''):
        if self.spin == name:
            return [dict(k='raw', t="s_memrealtime s[62:63]")]
        if self.enc:
            a, b, kind, sg = self.enc.split(':')
            ins = "s_memtime" if kind == 'cyc' else "s_memrealtime"
            if name in (a, b):
                return [dict(k='raw', t=f"{ins} s[64:65]" if name == a else f"{ins} s[66:67]")]
        if not self.diag or (self.sel and not any(name.startswith(p) for p in self.sel)):
            return []
        return [dict(k='smem', t="STAMP", name=name)]

    def xb(self, c):
        return (c + self.xrot) % self.NX

    def sset(self, reg, base, val, **kw):
        old = self.sval.get(reg)
        self.sval[reg] = (base, val)
        if old and old[0] == base and -32768 <= val - old[1] < 32768:
            if val == old[1]:
                return dict(k='none', t="", **kw)
            return dict(k='salu', t=f"s_addk_i32 {reg}, {val - old[1]}", **kw)
        if base is None:
            if 0 <= val < 32768:
                return dict(k='salu', t=f"s_movk_i32 {reg}, {val}", **kw)
            return dict(k='salu8', t=f"s_mov_b32 {reg}, {val}", **kw)
        if val == 0:
            return dict(k='salu', t=f"s_mov_b32 {reg}, {base}", **kw)
        return dict(k='salu8', t=f"s_add_u32 {reg}, {base}, {val}", **kw)

    def dma_x(self, c, halves=(0, 1)):
        buf = self.xb(c) * XBUF
        out = []
        for hf in halves:
            so = ('s48', 's49')[hf]
            if self.rot:
                out.append(dict(k='salu', t=f"s_add_u32 {so}, {('s8', 's9')[hf]}, s{90+c}", sow=('x', c, hf)))
            else:
                out.append(self.sset(so, ('s8', 's9')[hf], c * 128, sow=('x', c, hf)))
            if self.cov & 1:
                out.append(self.sset('m0', ('s20', 's100')[hf], buf, m0=('x', c, hf)))
            else:
                out.append(self.sset('m0', 's20', buf + hf * 4096, m0=('x', c, hf)))
            for k in ((0, 2, 1, 3) if self.cov & 2 else range(4)):
                out.append(dict(k='vmem', t=f"buffer_load_dwordx4 v{self.V_XD[k]}, s[24:27], {so} offen offset:{k*1024} {self.xpol} lds",
                                tag=('x', c), dma=('x', c, hf), so=('x', c, hf), region=(buf, buf + XBUF)))
        return out

    def dma_w(self, g, t):
        slot = self.wslot[(g, t)]
        if self.rot:
            out = []
            if self.sval.get('s53', (None,))[0] != ('c', t // 2):
                out.append(dict(k='salu8', t=f"s_mul_i32 s53, s{90+t//2}, 448", sow=('w', None)))
                self.sval['s53'] = (('c', t // 2), 0)
            out.append(self.sset('s53', ('c', t // 2), (t % 2) * 28672, sow=('w', g, t)))
        else:
            out = [self.sset('s53', None, t * 28672, sow=('w', g, t))]
        out.append(self.sset('m0', 's21', slot, m0=('w', g, t)))
        for tap in range(3):
            out.append(dict(k='vmem', t=f"buffer_load_dwordx4 v{self.V_WD[g][tap]}, s[28:31], s53 offen offset:{tap*1024} {self.wpol} lds",
                            tag=('w', g, t), dma=('w', g, t), so=('w', g, t), region=(slot, slot + WSLOT)))
        return out

    def pf_w(self, c):
        return [dict(k='salu8', t=f"s_mul_i32 s55, s{90+c}, 448", sow=('p', c)) if self.rot else self.sset('s55', None, c * 57344, sow=('p', c)),
                dict(k='vmem', t=f"buffer_load_dword v{self.V_DUM + c % 2}, v{self.V_PF}, s[28:31], s55 offen {self.pfpol if c < self.pfpoln else ''}", tag=('pf', c), so=('p', c))]

    def px(self, c):
        return [dict(k='vmem', t=f"buffer_load_dword v{self.V_DUM + 3}, v{self.V_PX}, s[24:27], s8 offen offset:{c*128} {self.pxpol}", tag=('px', c))]

    def rd_w(self, g, t, n, tap, h, dst):
        slot = self.wslot[(g, t)]
        win = 0 if slot >= self.W0 else 1
        off = slot - self.W0 + win * 65536 + h * 512
        assert 0 <= off < 65536 and (g == 'B' or win == 0)
        base = (self.V_RA if g == 'A' else self.V_RB + win * 6) + n * 3 + tap
        return dict(k='ds', t=f"ds_read_b64_tr_b16 {rn(dst, 2, 2*h)}, v{base} offset:{off}", w=rl(dst, 2, 2 * h),
                    need=('w', g, t), region=(slot, slot + WSLOT))

    def rd_x(self, t, i, d):
        c, j = t // 2, t % 2
        buf = self.xb(c)
        a = (self.V_XA if i < 8 else self.V_XH)[(buf // 2) * 2 + j]
        off = (buf % 2) * XBUF + (i * 2048 if i < 8 else 0)
        return dict(k='ds', t=f"ds_read_b128 {rn(d)}, v{a} offset:{off}", w=rl(d), need=('x', c), region=(buf * XBUF, (buf + 1) * XBUF))

    def mfma(self, g, n, s, wreg, xr, first):
        a = self.acc(g, n, s)
        c = "0" if first else f"v[{a}:{a+3}]"
        return dict(k='mfma', t=f"v_mfma_f32_16x16x32_bf16 v[{a}:{a+3}], {rn(wreg)}, {rn(xr)}, {c}",
                    r=rl(wreg) + rl(xr), w=[('v', a + q) for q in range(4)], ops=(wreg, xr))

    def const_reads(self):
        o = []
        for q, (g, n) in enumerate((('A', 0), ('A', 1), ('B', 0), ('B', 1))):
            d = self.V_C + q * 8
            off = n * (64 if g == 'A' else 128)
            o.append(dict(k='ds', t=f"ds_read_b128 v[{d}:{d+3}], v{self.V_CA[g]} offset:{off}", w=rl(('v', d))))
            o.append(dict(k='ds', t=f"ds_read_b128 v[{d+4}:{d+7}], v{self.V_CA[g]} offset:{512+off}", w=rl(('v', d + 4))))
        return o

    def epi_pair(self, g, n, s, hh, j):
        a = self.acc(g, n, s) + 2 * hh
        T = self.V_ET + (j % self.NT) * 2
        sc = self.V_C + (n + (2 if g == 'B' else 0)) * 8 + 2 * hh
        sh = sc + 4
        d = self.acc(g, 0, s) + 2 * n + hh if g == 'A' else self.acc(g, n, s) + hh
        return [[V(f"v_pk_fma_f32 v[{a}:{a+1}], v[{a}:{a+1}], v[{sc}:{sc+1}], v[{sh}:{sh+1}]", [a, a + 1, sc, sc + 1, sh, sh + 1], [a, a + 1], pk=True,
                   alt=[V(f"v_fma_f32 v{a+i}, v{a+i}, v{sc+i}, v{sh+i}", [a + i, sc + i, sh + i], [a + i]) for i in range(2)])],
                [V(f"v_exp_f32 v{T+i}, v{a+i}", [a + i], [T + i], True) for i in range(2)],
                [V(f"v_pk_fma_f32 v[{T}:{T+1}], v[{T}:{T+1}], s[50:51], s[50:51]", [T, T + 1], [T, T + 1], pk=True,
                   alt=[V(f"v_fma_f32 v{T+i}, v{T+i}, s50, s50", [T + i], [T + i]) for i in range(2)])],
                [V(f"v_rcp_f32 v{T+i}, v{T+i}", [T + i], [T + i], True) for i in range(2)],
                [V(f"v_pk_mul_f32 v[{T}:{T+1}], v[{a}:{a+1}], v[{T}:{T+1}]", [a, a + 1, T, T + 1], [T, T + 1], pk=True,
                   alt=[V(f"v_mul_f32 v{T+i}, v{a+i}, v{T+i}", [a + i, T + i], [T + i]) for i in range(2)])],
                [V(f"v_cvt_pk_bf16_f32 v{d}, v{T}, v{T+1}", [T, T + 1], [d])]]

    def store(self, d, va, so, plain=False):
        return dict(k='vmem', t=f"buffer_store_dwordx4 v[{d}:{d+3}], v{va}, s[32:35], s{so} offen {'' if plain else self.pol}".rstrip(),
                    r=rl(('v', d)), store=True, tag=('st',))

    def epi_schedule(self, gaps, tiles, tile_end, NM, ep, commit):
        bmin, ntrmax, fmax = ep
        jobs = []
        posts = {}
        for g, n, s in tiles:
            key = ('A', s) if g == 'A' else ('W', n, s)
            for hh in range(2):
                jobs.append(dict(st=self.epi_pair(g, n, s, hh, len(jobs)), i=0, rdy=tile_end[(g, n, s)] + 3, key=key, j=len(jobs)))
            if key in posts:
                continue
            if g == 'A':
                pk = self.acc('A', 0, s)
                posts[key] = dict(left=4, rdy=None, nxt=None, st=[
                    ('perm', V(f"v_permlane16_swap_b32 v{pk}, v{pk+2}", [pk, pk + 2], [pk, pk + 2], perm=True), 0),
                    ('perm', V(f"v_permlane16_swap_b32 v{pk+1}, v{pk+3}", [pk + 1, pk + 3], [pk + 1, pk + 3], perm=True), 1),
                    ('store', self.store(pk, self.V_ST['A'], 40 + s), 0)])
            else:
                a = self.acc(g, n, s)
                item = s if n == 0 else 8 + s % 4
                rg = (self.STG, self.STG + 24576)
                pi = item // 2
                grp = [q for q, z in enumerate(self.xgrp) for _ in range(z)][pi]
                posts[key] = dict(left=2, rdy=None, nxt=[('G', grp)], st=[
                    ('dsw', dict(k='ds', t=f"ds_write_b64 v{self.V_XW}, v[{a}:{a+1}] offset:{item*1024}", r=rl(('v', a), 2), w=[], wregion=rg, xw=grp), self.xlag)])
                if s % 2 == 0:
                    if ('G', grp) not in posts:
                        posts[('G', grp)] = dict(left=2 * self.xgrp[grp], rdy=None, nxt=[], st=[('bar', dict(k='bar', need=[], idx=('G', grp), xw=grp), 0)])
                    posts[('G', grp)]['nxt'].append(('X', pi))
                    posts[('X', pi)] = dict(left=1, rdy=None, nxt=None, st=[
                        ('dsr', dict(k='ds', t=f"ds_read_b128 v[{a}:{a+3}], v{self.V_XR} offset:{item*1024}", w=rl(('v', a)), xr=grp), self.rlag),
                        ('storeb', self.store(a, self.V_ST['F' if n == 0 else 'S'], 56 + s // 2, pi >= 6 - self.nplain), 0)])
        extra = 0
        tail = []
        g = min(jb['rdy'] for jb in jobs)
        laststore = -99
        ta_free = 0
        NT = self.NT

        def ready(jb, g):
            st, j = jb['i'], jb['j']
            if st >= 6 or jb['rdy'] > g:
                return False
            if st == 0 and j > 0 and jobs[j - 1]['i'] == 0:
                return False
            if st == 1 and j >= NT and not (jobs[j - NT]['i'] >= 6 and jobs[j - NT]['rdy'] <= g):
                return False
            if st == 0 and j >= NT + 2 and jobs[j - NT - 2]['i'] < 6:
                return False
            if st == 5 and any(jobs[q]['i'] < 5 for q in range(max(0, j - 3), j)):
                return False
            return True

        def arrive(key, g):
            S = posts[key]
            S['left'] -= 1
            S['t'] = max(S.get('t', 0), g)
            if S['left'] == 0:
                S['rdy'] = S['t']

        def take(jb, g, out):
            out.append(jb['st'][jb['i']].pop(0))
            if not jb['st'][jb['i']]:
                jb['i'] += 1
                jb['rdy'] = g + 1
                if jb['i'] == 6:
                    arrive(jb['key'], g + 1)

        def ptake(S, g, out, intail):
            kind, it, lag = S['st'].pop(0)
            out.append(it)
            lag = min(lag, 1) if intail else lag
            S['rdy'] = g + lag
            if not S['st'] and S['nxt']:
                for y in S['nxt']:
                    arrive(y, g + lag)

        def pready(kinds, g):
            return [S for S in posts.values() if S['st'] and S['st'][0][0] in kinds and S['rdy'] is not None and S['rdy'] <= g]
        lo = 0
        while any(S['st'] for S in posts.values()):
            intail = g >= NM - 1
            G = gaps[g] if not intail else dict(mem=[], v=[], used=0, excl=False)
            if G['excl']:
                g += 1
                continue
            while lo < len(jobs) and jobs[lo]['i'] >= 6:
                lo += 1
            act = jobs[lo:lo + NT + 3]
            used = G['used']
            pre, mem, v = [], [], []
            free3 = 0
            for S in pready(('bar',), g)[:1]:
                ptake(S, g, pre, intail)
                extra += 45
            if used <= 1:
                for S in pready(('dsr',), g)[:1]:
                    ptake(S, g, mem, intail); used += 1
            if used == 0:
                for S in pready(('store', 'storeb'), g)[:1]:
                    if intail or (g - laststore >= self.stsp and g > self.stmin):
                        ta_free = max(ta_free, 16 * min(g, NM) + extra) + (self.tast if S['st'][0][0] == 'store' else self.tasb)
                        ptake(S, g, mem, intail)
                        laststore = g
                        extra += 14
                        free3 = 1
            if used == 0 and not free3:
                for S in pready(('dsw',), g)[:1]:
                    ptake(S, g, mem, intail); used += 3
            cap = 3 if free3 else 2

            def cands(st):
                return [jb for jb in act if jb['i'] == st and ready(jb, g)]

            def filler(limit, allow_over, scal=False):
                nonlocal used
                while used < limit:
                    pm = pready(('perm',), g)
                    tr = cands(3) + cands(1)
                    cv = cands(5)
                    room = limit - used
                    if room >= 2 and pm:
                        ptake(pm[0], g, v, intail); used += 2
                    elif room >= 2 and tr and len(cv) < 3:
                        take(tr[0], g, v); used += 2
                    elif cv:
                        take(cv[0], g, v); used += 1
                    elif scal and (cands(2) + cands(0) + cands(4)):
                        l = cands(2) + cands(0) + cands(4)
                        jb = ([x for x in l if not x['st'][x['i']][0].get('pk')] + l)[0]
                        if jb['st'][jb['i']][0].get('pk'):
                            jb['st'][jb['i']] = list(jb['st'][jb['i']][0]['alt'])
                        take(jb, g, v); used += 1
                    elif allow_over and tr:
                        take(tr[0], g, v); used += 2
                    else:
                        break
            pk = cands(4) + cands(2) + [jb for jb in act if jb['i'] == 0 and jb['rdy'] <= g and jb['j'] < NT + 2 + lo][:fmax]
            ntr = sum(len(jb['st'][jb['i']]) for jb in cands(1) + cands(3))
            if intail:
                filler(99, True)
                for jb in pk:
                    if ready(jb, g):
                        take(jb, g, v); used += 1
                tail += pre + mem + v
                extra += 4 * used + (60 if pre or any('xr' in x for x in mem) else 0)
            else:
                if not free3 and len(pk) >= bmin and ntr <= ntrmax and (2 * ntr + used + len(cands(5)) >= 4 or len(pk) >= bmin + 3):
                    filler(5, True)
                    used = max(used, 5)
                    for jb in pk:
                        if ready(jb, g):
                            take(jb, g, v); used += 1
                else:
                    filler(cap, False, True)
                extra += 4 * max(0, used - cap)
                if commit:
                    G['pre'] += pre
                    G['mem'] += mem
                    G['v'] += v
                    G['used'] = used - free3
            g += 1
            assert g < NM + 300
        return extra, ta_free - 16 * NM, tail

    def consts(self):
        m, v, g, b = self.V_PAR
        T = self.V_T
        o = []

        def unpack(src, lo, hi):
            o.append(V(f"v_lshlrev_b32 v{lo}, 16, v{src}", [src], [lo]))
            o.append(V(f"v_and_b32 v{hi}, 0xffff0000, v{src}", [src], [hi]))

        def rnd(lo, hi):
            o.append(V(f"v_cvt_pk_bf16_f32 v{T+10}, v{lo}, v{hi}", [lo, hi], [T + 10]))
            unpack(T + 10, lo, hi)
        unpack(v, T, T + 1)
        o[0]['needvm'] = ('par',)
        o.append(V(f"v_add_f32 v{T}, 0x3727c5ac, v{T}", [T], [T]))
        o.append(V(f"v_add_f32 v{T+1}, 0x3727c5ac, v{T+1}", [T + 1], [T + 1]))
        rnd(T, T + 1)
        o.append(V(f"v_sqrt_f32 v{T}, v{T}", [T], [T], True))
        o.append(V(f"v_sqrt_f32 v{T+1}, v{T+1}", [T + 1], [T + 1], True))
        unpack(g, T + 2, T + 3)
        rnd(T, T + 1)
        o.append(V(f"v_rcp_f32 v{T}, v{T}", [T], [T], True))
        o.append(V(f"v_rcp_f32 v{T+1}, v{T+1}", [T + 1], [T + 1], True))
        unpack(m, T + 4, T + 5)
        rnd(T, T + 1)
        o.append(V(f"v_mul_f32 v{T}, v{T}, v{T+2}", [T, T + 2], [T]))
        o.append(V(f"v_mul_f32 v{T+1}, v{T+1}, v{T+3}", [T + 1, T + 3], [T + 1]))
        unpack(b, T + 6, T + 7)
        rnd(T, T + 1)
        o.append(V(f"v_fma_f32 v{T+6}, -v{T+4}, v{T}, v{T+6}", [T + 4, T, T + 6], [T + 6]))
        o.append(V(f"v_fma_f32 v{T+7}, -v{T+5}, v{T+1}, v{T+7}", [T + 5, T + 1, T + 7], [T + 7]))
        o.append(V(f"v_mul_f32 v{T}, s50, v{T}", [T], [T]))
        o.append(V(f"v_mul_f32 v{T+1}, s50, v{T+1}", [T + 1], [T + 1]))
        o.append(V(f"v_mul_f32 v{T+6}, s50, v{T+6}", [T + 6], [T + 6]))
        o.append(V(f"v_mul_f32 v{T+7}, s50, v{T+7}", [T + 7], [T + 7]))
        o.append(dict(k='ds', t=f"ds_write_b64 v{self.V_CW}, v[{T}:{T+1}]", r=[('v', T), ('v', T + 1)], w=[]))
        o.append(dict(k='ds', t=f"ds_write_b64 v{self.V_CW}, v[{T+6}:{T+7}] offset:512", r=[('v', T + 6), ('v', T + 7)], w=[]))
        return o

    def prologue(self):
        T = self.V_T
        XD = self.V_XD
        s = ""
        if self.spin == 'start' or self.enc:
            s += "s_memrealtime s[62:63]\n"
        if self.diag:
            s += "s_memtime s[60:61]\ns_memrealtime s[62:63]\n"
        s += """s_load_dwordx4 s[24:27], s[0:1], 0
s_load_dwordx8 s[12:19], s[0:1], 16
s_load_dwordx2 s[32:33], s[0:1], 48
"""
        if self.diag:
            s += "s_load_dwordx2 s[22:23], s[0:1], 64\n"
        s += f"""s_cmp_ge_u32 s2, 256
s_cbranch_scc1 L_exit
v_lshrrev_b32 v{T+2}, 6, v0
v_and_b32 v1, 63, v0
s_lshr_b32 s39, s2, 3
; every workgroup touches 16 lines of the code (32 workgroups per XCD cover 64 KiB) so that fetches hit L2
s_getpc_b64 s[8:9]
L_pc:
s_lshl_b32 s3, s39, 11
v_lshrrev_b32 v{T}, 4, v0
v_lshl_add_u32 v{T}, v{T}, 7, s3
v_min_u32 v{T}, L_last-L_pc, v{T}
v_mov_b32 v{T+1}, s9
v_add_co_u32 v{T}, vcc, s8, v{T}
v_readfirstlane_b32 s36, v{T+2}
s_and_b32 s38, s2, 7
v_addc_co_u32 v{T+1}, vcc, 0, v{T+1}, vcc
global_load_dword v{self.V_DUM+2}, v[{T}:{T+1}], off {self.warmpol}
s_and_b32 s37, s39, 3
s_lshr_b32 s3, s39, 2
s_lshl_b32 s38, s38, 3
s_add_u32 s38, s38, s3
s_mul_i32 s40, s38, 229376
s_mul_i32 s3, s36, 3584
s_lshl_b32 s20, s36, 13
s_mul_i32 s21, s36, 3072
s_sub_u32 s4, {23*896}, s3
s_movk_i32 s52, 896
s_bitcmp1_b32 s36, 1
s_cselect_b32 s3, s4, s3
s_cselect_b32 s52, -896, s52
s_add_u32 s8, s40, s3
s_add_u32 s9, s8, s52
s_add_u32 s9, s9, s52
s_sub_u32 s5, s52, 2048
{self.cov1()}; x DMA voffsets (descriptor base is biased by -4096)
v_lshrrev_b32 v{T+3}, 3, v1
v_and_b32 v{T+4}, 7, v1
v_lshrrev_b32 v{T+5}, 4, v1
v_xor_b32 v{T+6}, v{T+4}, v{T+5}
v_mul_u32_u24 v{T+7}, 14336, v{T+3}
v_lshl_add_u32 v{T+7}, v{T+6}, 4, v{T+7}
{self.cov2()}v_add_u32 v{XD[2]}, s5, v{XD[0]}
v_add_u32 v{XD[3]}, s5, v{XD[1]}
s_mul_i32 s3, s39, 42
s_mul_i32 s4, s36, 11
s_add_u32 s3, s3, s4
v_min_u32 v{T+8}, 10, v1
v_add_u32 v{T+8}, s3, v{T+8}
v_min_u32 v{T+8}, 1343, v{T+8}
v_mul_u32_u24 v{T+9}, 2341, v{T+8}
v_lshrrev_b32 v{T+9}, 20, v{T+9}
v_mul_u32_u24 v{T+9}, {401408-57344}, v{T+9}
v_lshl_add_u32 v{self.V_PF}, v{T+8}, 7, v{T+9}
"""
        if self.rot:
            s += f"s_and_b32 s90, s2, 7\ns_cmp_eq_u32 s90, 7\ns_cselect_b32 s90, 3, s90\ns_lshl_b32 s90, s90, 7\n"
        if self.q_early:
            s += self.colsetup() + self.par_addr()
        if self.w_early:
            s += self.prologue_w()
        if self.diag:
            s += "s_memtime s[98:99]\n"
        s += f"""s_mov_b32 s30, {WB}
s_mov_b32 s31, 0x20000
s_waitcnt lgkmcnt(0)
s_mov_b32 s28, s26
s_mov_b32 s29, s27
s_sub_u32 s24, s24, 4096
s_subb_u32 s25, s25, 0
s_mov_b32 s26, {XB+4096}
s_mov_b32 s27, 0x20000
"""
        return s

    def cov1(self):
        if not self.cov & 1:
            return ""
        return """s_add_u32 s100, s20, 4096
s_bitcmp1_b32 s37, 0
s_cselect_b32 s3, s9, s8
s_cselect_b32 s9, s8, s9
s_cselect_b32 s4, s100, s20
s_cselect_b32 s100, s20, s100
s_mov_b32 s8, s3
s_mov_b32 s20, s4
"""

    def cov2(self):
        T, XD = self.V_T, self.V_XD
        if not self.cov & 2:
            return f"""v_add_u32 v{XD[0]}, 4096, v{T+7}
v_xor_b32 v{XD[1]}, 64, v{XD[0]}
v_add_u32 v{XD[1]}, {114688-1024}, v{XD[1]}
"""
        return f"""s_bitcmp1_b32 s37, 1
s_cselect_b32 s3, 114688, 0
s_sub_u32 s4, {114688+3072}, s3
s_addk_i32 s3, 4096
v_xor_b32 v{XD[1]}, 64, v{T+7}
v_add_u32 v{XD[0]}, s3, v{T+7}
v_add_u32 v{XD[1]}, s4, v{XD[1]}
"""

    def cov3(self):
        T = self.V_T
        if not self.cov & 2:
            return ""
        return f"""s_bitcmp1_b32 s37, 1
s_cselect_b32 s5, 1088, 0
v_xor_b32 v{T+5}, s5, v{T+5}
"""

    def colsetup(self):
        return """s_lshl_b32 s6, s37, 8
s_lshr_b32 s4, s37, 1
s_mul_i32 s7, s4, 448
s_add_u32 s7, s7, 192
s_mul_i32 s4, s4, 192
s_sub_u32 s10, s6, s4
s_add_u32 s10, s10, 128
"""

    def prologue_w(self):
        T = self.V_T
        WA, WBr = self.V_WD['A'], self.V_WD['B']
        return ('' if self.q_early else self.colsetup()) + f"""s_lshl_b32 s3, s36, 2
s_and_b32 s3, s3, 4
v_and_b32 v{T+5}, 1, v{T+5}
v_lshl_add_u32 v{T+5}, v{T+5}, 1, s3
v_xor_b32 v{T+4}, v{T+4}, v{T+5}
s_mul_i32 s3, s36, 7168
v_mul_u32_u24 v{T+3}, 896, v{T+3}
v_lshl_add_u32 v{T+3}, v{T+4}, 4, v{T+3}
v_add_u32 v{T+3}, s3, v{T+3}
v_add_u32 v{WA[0]}, s6, v{T+3}
v_add_u32 v{WA[1]}, {401408-1024}, v{WA[0]}
v_add_u32 v{WA[2]}, {802816-2048}, v{WA[0]}
s_sub_u32 s11, s7, 64
v_mov_b32 v{T+5}, s10
v_mov_b32 v{T+6}, s11
v_cmp_gt_u32 vcc, 4, v{T+4}
s_mov_b32 s50, {NLOG2E:#x}
s_mov_b32 s51, s50
s_mov_b32 s34, {XB}
s_mov_b32 s35, 0x20000
v_cndmask_b32 v{T+5}, v{T+6}, v{T+5}, vcc
v_add_u32 v{WBr[0]}, v{T+5}, v{T+3}
v_add_u32 v{WBr[1]}, {401408-1024}, v{WBr[0]}
v_add_u32 v{WBr[2]}, {802816-2048}, v{WBr[0]}
"""

    def prologue2(self):
        T = self.V_T
        RA, RB, XA, XH = self.V_RA, self.V_RB, self.V_XA, self.V_XH
        s = f"""; s3 = nu, s4 = mu, s5 = tap step (+-1024)
s_and_b32 s3, s36, 1
s_lshr_b32 s4, s36, 1
s_lshl_b32 s5, s4, 11
s_sub_u32 s5, 1024, s5
v_lshrrev_b32 v{T}, 4, v1
v_bfe_u32 v{T+1}, v1, 2, 2
v_mul_u32_u24 v{T+2}, 3072, v{T}
v_and_b32 v{T+3}, 3, v1
v_lshl_add_u32 v{T+2}, v{T+1}, 7, v{T+2}
v_lshl_add_u32 v{T+2}, v{T+3}, 3, v{T+2}
v_bfe_u32 v{T+4}, v1, 3, 2
v_lshl_add_u32 v{T+2}, v{T+4}, 5, v{T+2}
v_add_u32 v{T+2}, {self.W0 + 1024}, v{T+2}
s_lshl_b32 s11, s3, 6
v_xor_b32 v{RA+1}, s11, v{T+2}
v_xor_b32 v{RA+4}, 32, v{RA+1}
s_lshl_b32 s54, s3, 5
v_xor_b32 v{RB+1}, s54, v{T+2}
v_xor_b32 v{RB+4}, 64, v{RB+1}
"""
        for b in (RA, RA + 3, RB, RB + 3):
            s += f"v_subrev_u32 v{b}, s5, v{b+1}\nv_add_u32 v{b+2}, s5, v{b+1}\n"
        for q in range(6):
            s += f"v_subrev_u32 v{RB+6+q}, 65536, v{RB+q}\n"
        s += f"""; x LDS read addresses
v_and_b32 v{T+1}, 15, v1
v_lshrrev_b32 v{T+2}, 1, v{T+1}
v_xor_b32 v{T+4}, v{T+2}, v{T}
v_lshlrev_b32 v{T+5}, 7, v{T+1}
v_lshl_add_u32 v{T+5}, v{T+4}, 4, v{T+5}
{self.cov3()}s_lshl_b32 s5, s4, 14
v_add_u32 v{XA[0]}, s5, v{T+5}
s_sub_u32 s5, {15*2048}, s5
v_add_u32 v{XH[0]}, s5, v{T+5}
v_xor_b32 v{XA[1]}, 64, v{XA[0]}
v_xor_b32 v{XH[1]}, 64, v{XH[0]}
v_add_u32 v{XA[2]}, 65536, v{XA[0]}
v_add_u32 v{XA[3]}, 65536, v{XA[1]}
v_add_u32 v{XH[2]}, 65536, v{XH[0]}
v_add_u32 v{XH[3]}, 65536, v{XH[1]}
s_mul_i32 s5, s4, {15*896}
s_add_u32 s40, s40, s5
"""
        for q in range(1, 8):
            s += f"s_add_u32 s{40+q}, s{39+q}, s52\n"
        s += "s_cmp_eq_u32 s3, 0\n"
        for q in range(4):
            s += f"s_cselect_b32 s{56+q}, s{40+2*q}, s{41+2*q}\n"
        s += f"""; A store offset
v_mul_u32_u24 v{T+5}, 14336, v{T+1}
v_lshrrev_b32 v{T+6}, 1, v{T}
v_lshl_add_u32 v{T+5}, v{T+6}, 4, v{T+5}
v_and_b32 v{T+7}, 1, v{T}
v_lshl_add_u32 v{T+5}, v{T+7}, 5, v{T+5}
s_add_u32 s5, s6, s11
v_add_u32 v{self.V_ST['A']}, s5, v{T+5}
s_lshl_b32 s5, s3, 1
v_or_b32 v{T+6}, s5, v{T+6}
v_and_b32 v{T+2}, 3, v{T+2}
v_xor_b32 v{T+6}, v{T+6}, v{T+2}
v_lshlrev_b32 v{T+5}, 6, v{T+1}
v_lshl_add_u32 v{T+5}, v{T+6}, 4, v{T+5}
v_lshl_add_u32 v{T+5}, v{T+7}, 3, v{T+5}
s_mul_i32 s5, s4, 12288
s_add_u32 s5, s5, {self.STG}
v_add_u32 v{self.V_XW}, s5, v{T+5}
; exchange read address and B store offsets
v_lshrrev_b32 v{T+5}, 2, v1
v_bfe_u32 v{T+6}, v1, 3, 2
v_xor_b32 v{T+6}, v{T+6}, v{T+3}
v_lshlrev_b32 v{T+7}, 6, v{T+5}
v_lshl_add_u32 v{T+7}, v{T+6}, 4, v{T+7}
s_lshl_b32 s4, s3, 10
s_add_u32 s5, s5, s4
v_add_u32 v{self.V_XR}, s5, v{T+7}
v_mul_u32_u24 v{T+5}, 14336, v{T+5}
v_lshl_add_u32 v{T+5}, v{T+3}, 4, v{T+5}
v_add_u32 v{self.V_ST['F']}, s10, v{T+5}
v_add_u32 v{self.V_ST['S']}, s7, v{T+5}
v_and_b32 v{T+5}, 1, v1
v_mul_i32_i24 v{T+5}, s52, v{T+5}
v_add_u32 v{self.V_PX}, v{T+5}, v{self.V_XD[0]}
; constants
v_lshlrev_b32 v{T+5}, 4, v{T}
v_add_u32 v{T+5}, {self.CONST}, v{T+5}
s_lshl_b32 s4, s3, 7
v_add_u32 v{self.V_CA['A']}, s4, v{T+5}
s_add_u32 s4, s11, 256
v_add_u32 v{self.V_CA['B']}, s4, v{T+5}
v_lshlrev_b32 v{self.V_CW}, 3, v1
v_add_u32 v{self.V_CW}, {self.CONST}, v{self.V_CW}
"""
        if not self.q_early:
            s += self.par_addr()
        if self.rot:
            for c in range(1, 7):
                s += f"s_add_u32 s{90+c}, s{89+c}, 128\ns_cmp_eq_u32 s{90+c}, 896\ns_cselect_b32 s{90+c}, 0, s{90+c}\n"
        return s

    def par_addr(self):
        T = self.V_T + 12
        return f"""s_sub_u32 s4, s10, 128
s_sub_u32 s5, s7, 192
v_mov_b32 v{T}, s6
v_mov_b32 v{T+1}, s4
v_cmp_gt_u32 vcc, 32, v1
v_mov_b32 v{T+2}, s5
s_nop 0
v_cndmask_b32 v{T}, v{T+1}, v{T}, vcc
v_cmp_gt_u32 vcc, 48, v1
s_nop 1
v_cndmask_b32 v{T}, v{T+2}, v{T}, vcc
v_lshl_add_u32 v{T}, v1, 2, v{T}
"""

    def par_loads(self):
        T = self.V_T + 12
        return [dict(k='vmem', t=f"global_load_dword v{self.V_PAR[q]}, v{T}, s[{12+2*q}:{13+2*q}]", tag=('par',)) for q in range(4)]

    def build(self, par):
        self.par = par
        self.sval = {}
        self.nstamp = 0
        self.stampnames = []
        L, P, PA, LEAD, NX, NW, NS = self.L, self.P, self.PA, self.LEAD, self.NX, self.NW, self.NS
        nb = (14 - L) // 2
        assert L % 2 == 0 and P <= L
        units = []
        for t in range(14):
            units.append(('A', t))
            if t < 2 * nb:
                units.append(('B', t))
        lag = list(range(2 * nb, 14))
        nre = max(0, len(lag) - NS)
        reread = self.reread if self.reread is not None else lag[len(lag) - 2 - nre:len(lag) - 2]
        order2 = [12, 13] + sorted(reread) + [t for t in lag[:-2] if t not in reread]
        if self.order:
            units = [(x[0], int(x[1:])) for x in self.order if x[0] in 'AB']
            to2 = [int(x[1:]) for x in self.order if x[0] == 'T']
            P = len(to2)
        else:
            to2 = order2[L - P:]
            units += [('B', t) for t in order2[:L - P]]
        NU = len(units)
        assert sorted(units + [('B', t) for t in to2]) == sorted((g_, t) for g_ in 'AB' for t in range(14))
        kA = units.index(('A', 14 - PA))
        assert units[kA:kA + PA] == [('A', t) for t in range(14 - PA, 14)]
        upos = {u: k for k, u in enumerate(units)}
        ufirst = dict(upos)
        ulast = dict(upos)
        for t in range(14 - PA, 14):
            ufirst[('A', t)] = kA
            ulast[('A', t)] = kA + PA - 1
        for t in to2:
            upos[('B', t)] = ufirst[('B', t)] = ulast[('B', t)] = NU
        inst = []
        for t in range(14):
            if t in reread:
                inst += [(ufirst[('A', t)], ulast[('A', t)], (t, 1)), (upos[('B', t)], upos[('B', t)], (t, 2))]
            else:
                inst.append((ufirst[('A', t)], upos[('B', t)], (t, 1)))
        inst.sort()
        busy = [-9] * NS
        xset = {}
        for a_, b_, key in inst:
            q = min(range(NS), key=lambda i: busy[i])
            assert busy[q] < a_, ("x register sets exhausted", key)
            busy[q] = b_
            xset[key] = q

        def xinst(g, t):
            return (t, 2) if (g == 'B' and t in reread) else (t, 1)

        def xreg(g, t, i):
            return ('a', xset[xinst(g, t)] * XS + i * 4)
        ring = [('a', r) for r in range(NS * XS, 256, 4)] + [('v', r) for r in self.V_FREE]
        NF = len(ring)
        self.wslot = {}
        mf = []
        frags = {}
        xuse = {}
        unit_first = {}
        seen = set()
        tile_end = {}
        lastuse = {}

        def add(g, t, n, s, tap, reg):
            i = s + tap - 1
            if i < 0:
                return
            first = (g, n, s) not in seen
            seen.add((g, n, s))
            xuse.setdefault((xinst(g, t), i), [len(mf), 0])[1] = len(mf)
            frags.setdefault((g, t, n, tap), dict(first=len(mf), reg=reg))['last'] = len(mf)
            lastuse[reg] = lastuse[xreg(g, t, i)] = len(mf)
            mf.append(self.mfma(g, n, s, reg, xreg(g, t, i), first))
            tile_end[(g, n, s)] = len(mf) - 1
        for k, (g, t) in enumerate(units):
            if kA < k < kA + PA:
                unit_first[(g, t)] = unit_first[units[kA]] + 46 * (k - kA)
                continue
            unit_first[(g, t)] = len(mf)
            if k == kA:
                for s in range(8):
                    for n in range(2):
                        for q in range(PA):
                            for tap in range(3):
                                add(g, t + q, n, s, tap, ring[(6 * k + (n * PA + q) * 3 + tap) % NF])
            else:
                for n in range(2):
                    for s in self.rows(g, n):
                        for tap in ((2, 1, 0) if (self.snake and s % 2) else (0, 1, 2)):
                            add(g, t, n, s, tap, ring[(6 * k + n * 3 + tap) % NF])
        M2 = len(mf)
        keep = {xreg('B', t, i) for t in to2 for i in range(9)}
        pool = sorted((lu, r) for r, lu in lastuse.items() if r not in keep)
        assert len(pool) >= 6 * P, (len(pool), P)
        for n in range(2):
            for s in self.rows('B', n):
                for q, t in enumerate(to2):
                    for tap in range(3):
                        add('B', t, n, s, tap, pool[(n * P + q) * 3 + tap][1])
        NM = len(mf)
        assert NM == 14 * (80 + par)
        XL = self.XL
        bpos = [unit_first[u] - (self.blead[k - 1] if 1 <= k <= len(self.blead) else LEAD + XL) - 1 for k, u in enumerate(units)]
        bpos[kA] -= 3 * (PA - 1) * 2
        if PA > 1 and self.early:
            bpos[kA + 1] = unit_first[units[kA]] + self.kz
        need = [[] for u in units]
        for u in units:
            need[ufirst[u]].append(('w',) + u)
        xbar = {}
        for c in range(7):
            xbar[c] = ufirst[('A', 2 * c)]
            need[xbar[c]].append(('x', c))
        bpos.append(M2 - LEAD - XL - 1 - 3 * P)
        assert bpos == sorted(bpos)
        need.append([('w', 'B', t) for t in to2])
        bpos.append(M2)
        need.append([])
        nbar = len(bpos)
        pro = self.pro.split(',')
        sched = {p: [] for p in range(-1, nbar)}
        relbar = set()
        xrel = {}
        for c in range(7):
            xrel[c] = max(min(upos[('B', t)] + 2, NU + 1) if t in reread else (ufirst if self.early else ulast)[('A', t)] + 1 for t in (2 * c, 2 * c + 1))
        pp = -1
        for c in range(7):
            if f'x{c}1' in pro:
                p = -1
            else:
                p = max(xrel[c - NX] if c >= NX else 0, xbar[c] - self.xahead, pp + 1)
                if self.xsched:
                    p = self.xsched[c]
                if c >= NX:
                    relbar.add(p)
            assert p < xbar[c]
            pp = p
            sched[p].append(('x', c))
        stg_rel = max(xrel[c] for c in range(7 - NX, 7) if self.xb(c) == 0)
        assert stg_rel < nbar
        relbar.add(max(stg_rel, NU))
        slots = [[-1, self.W0 + i * WSLOT] for i in range(NW)]
        for i in range(5):
            a_ = self.W0 - 65536 + i * WSLOT
            av = max(xrel[c] for c in range(7 - NX, 7) if self.xb(c) * XBUF < a_ + WSLOT and a_ < (self.xb(c) + 1) * XBUF)
            slots.append([av, a_])
        pp = -1
        for k, u in enumerate(units + [('B', t) for t in to2]):
            sl = min(slots if u[0] == 'B' else slots[:NW], key=lambda x: x[0])
            p = max(sl[0], 0, pp)
            if k < NW:
                p = max(p, k - self.wahead)
            if self.dmaeven and p % 2 == self.dmaeven % 2 and p + 2 < ufirst[u] + 1 and k < self.dmaeven_until:
                p += 1
            if f'w{k}' in pro:
                p = -1
            else:
                relbar.add(p)
            assert p < ufirst[u], (k, u, p)
            pp = p
            self.wslot[u] = sl[1]
            sl[0] = (kA + 1 if (self.early and PA > 1 and kA <= k < kA + PA) else ufirst[u] + (1 if (self.wfast and 0 < k < min(kA, self.wfast)) else 2)) if k < NU else 999
            sched[p].append(('w', u))
        self.sched = sched
        self.units = units

        seq = self.stamp('p0')
        donew = done2 = False
        for q, tok in enumerate(pro):
            if tok[0] == 'w' and not donew:
                if not self.w_early:
                    seq.append(dict(k='raw', t=self.prologue_w()))
                donew = True
            if tok[0] == 'p':
                seq += self.pf_w(int(tok[1]))
            elif tok[0] == 'x':
                seq += self.dma_x(int(tok[1]), (int(tok[2]),))
            elif tok[0] == 'w':
                seq += self.dma_w(*units[int(tok[1:])])
            elif tok == 'H':
                seq.append(dict(k='raw', t="@HOP@"))
                seq += self.stamp('ph')
            elif tok == 't':
                seq += self.stamp(f'pt{q}')
            elif tok[0] == 'v':
                seq.append(dict(k='raw', t=f"s_waitcnt vmcnt({tok[1:]})"))
            elif tok == 'm':
                t_ = "s_lshl_b32 s3, s39, 2\ns_add_u32 s3, s3, s36\ns_min_u32 s3, s3, 111\ns_lshl_b32 s3, s3, 8\ns_add_u32 s4, s28, s3\ns_addc_u32 s5, s29, 0\n"
                for tap in range(3):
                    for q_ in range(4):
                        t_ += f"s_load_dword s{78 + tap*4 + q_}, s[4:5], {tap*401408 + q_*64}\n"
                seq.append(dict(k='raw', t=t_))
            elif tok == 'q':
                seq += self.par_loads()
            elif tok == 'C':
                assert done2
                seq.append(dict(k='vmwait', t='', tag=('par',)))
                seq += self.consts()
            elif tok == 'S':
                assert donew
                seq.append(dict(k='raw', t=self.prologue2()))
                done2 = True
        assert done2
        seq += self.stamp('p2')
        if 'H' not in pro:
            seq.append(dict(k='raw', t="@HOP@"))
            seq += self.stamp('ph')

        gaps = {g: dict(pre=[], z=[], mem=[], v=[], used=0, excl=False) for g in range(-1, NM)}
        g = self.first
        lastl = -1
        pfdone = set()
        issue_end = {}
        for p in range(0, nbar):
            l = sched[p]
            g = max(g, bpos[p] + 3)
            ws_, xs_ = [x for x in l if x[0] == 'w'], [x for x in l if x[0] == 'x']
            nw_ = self.xfirst.get(p, 99)
            for kind, arg in ws_[:nw_] + xs_ + ws_[nw_:] + ([('par', 0)] if p == self.parbar and not self.q_early else []):
                if kind == 'x':
                    pxl = self.pxs.get(arg, [])
                    cs = [c_ for c_ in range(7) if f'p{c_}' not in pro and c_ not in pfdone and c_ <= max([arg + self.pfmode // 2] + pxl)]
                    pfdone |= set(cs)
                    pf = [y for c_ in cs for y in self.pf_w(c_)]
                    items = self.dma_x(arg, [hf for hf in (0, 1) if f'x{arg}{hf}' not in pro])
                    if pxl:
                        iv = [i_ for i_, y in enumerate(items) if y['k'] == 'vmem'][1] + 1
                        items = items[:iv] + [y for c_ in pxl for y in self.px(c_)] + items[iv:]
                    items = items + pf if self.pfmode % 2 else pf + items
                    sp = self.xsp
                elif kind == 'w':
                    items = self.dma_w(*arg)
                    sp = self.wsp
                else:
                    items = self.par_loads()
                    sp = 2
                pend = []
                for it in items:
                    if it['k'] == 'vmem':
                        g = max(g, lastl + 1 + len([x for x in pend if x['k'] != 'none']))
                        gaps[g]['mem'].append(it)
                        gaps[g]['used'] = 2
                        gaps[g]['excl'] = True
                        q = g - 1
                        for x in reversed(pend):
                            gaps[q]['z'].insert(0, x)
                            if x['k'] == 'salu8':
                                gaps[q]['used'] += 1
                            if x['k'] != 'none':
                                q -= 1
                        pend = []
                        issue_end[it['tag']] = g
                        lastl = g
                        g += sp
                    else:
                        pend.append(it)
        self.stmin = lastl if self.stdelay else 0
        vis = {}
        self.kept = []
        for p in range(nbar):
            mine = [tg for tg in need[p] if tg not in vis]
            if mine or p in relbar:
                mine += [tg for q in range(p + 1, nbar) for tg in need[q] if tg not in vis and issue_end.get(tg, 0) + (self.safe1 if (self.safe1 and tg[0] == 'w' and p in self.safe1p) else self.safe) <= bpos[p]]
                for tg in mine:
                    vis[tg] = max(bpos[p], -1)
                gaps[max(bpos[p], -1)]['pre'].append(dict(k='bar', need=mine, idx=p))
                self.kept.append(p)
            gaps[max(bpos[p], -1)]['pre'] += self.stamp(f'B{p:02d}')
        allr = []
        for (g, t, n, tap), f in frags.items():
            if self.wfast and upos[(g, t)] < min(kA, self.wfast) and upos[(g, t)] > 0:
                f['first'] = min(f['first'], unit_first[(g, t)] + 3 + tap)
            allr.append((f['first'], f['last'], f['reg'], [self.rd_w(g, t, n, tap, h, f['reg']) for h in range(2)], ('w', g, t)))
        for ((t, ph), i), (a, b) in xuse.items():
            d = ('a', xset[(t, ph)] * XS + i * 4)
            if ph == 2 and t in to2:
                a = min(a, M2 + i)
            if ph == 1 and t >= 14 - PA:
                a = min(a, unit_first[units[kA]] + 10 + 2 * i + (16 if t > 14 - PA else 0))
            allr.append((a, b, d, [self.rd_x(t, i, d)], ('x', t // 2)))
        allr.sort(key=lambda x: x[0])
        reads = []
        prev_last = {}
        for a, b, reg, items, tg in allr:
            e = max(vis[tg], prev_last.get(reg, -1))
            prev_last[reg] = b
            for it in items:
                reads.append([a - LEAD, e, it, a])
        nxt = 10 ** 9
        E0 = min(tile_end.values())
        cnt = 0
        for r in reversed(reads):
            if self.dspair and nxt < 10 ** 9 and nxt >= E0 and cnt == 1 and gaps[nxt]['used'] == 0 and r[0] + 6 >= nxt:
                r[0] = nxt
                cnt = 2
                continue
            cnt = 1
            q = min(r[0], nxt - (2 if (self.dspair and nxt >= E0) else 1))
            while q >= 0 and gaps[q]['excl']:
                q -= 1
            r[0] = nxt = q
        cur = -1
        self.minlead = 999
        for tg, e, it, a in reads:
            g = max(tg, e, cur)
            if g < 0 and a >= self.nfirst:
                g = 0
            while g >= 0 and (gaps[g]['excl'] or gaps[g]['used'] >= 2):
                g += 1
            cur = g
            if a > 40:
                self.minlead = min(self.minlead, a - g)
            assert g < a, (g, a, it)
            gaps[g]['mem'].append(it)
            gaps[g]['used'] += 1

        def fill(items, g):
            for it in items:
                g += 1
                while gaps[g]['used'] > 0:
                    g += 1
                gaps[g]['mem' if it['k'] == 'ds' else 'v'].append(it)
                gaps[g]['used'] = 3 if (it['k'] == 'ds' and it.get('r')) else 2
            return g
        g = fill(self.consts(), bpos[self.parbar + 4] + 1) if 'C' not in pro else 0
        assert g < E0 - 90
        g = fill(self.const_reads(), E0 - 90)
        assert g < E0 - 8
        tiles = [('A', n, s) for s in range(8) for n in range(2)] + [('B', n, s) for n in range(2) for s in self.rows('B', n)]
        best = None
        for ep in ([tuple(self.ep)] if self.ep else [(b, n_, f) for b in range(3, 11) for n_ in (2, 3) for f in (2, 3, 4, 5)]):
            ex, fin, tl = self.epi_schedule(gaps, tiles, tile_end, NM, ep, False)
            if best is None or fin < best[0]:
                best = (fin, ep)
        ex, fin, tail = self.epi_schedule(gaps, tiles, tile_end, NM, best[1], True)
        gaps[tile_end[('A', 1, 7)]]['pre'] += self.stamp('Aend')
        gaps[M2 - 1]['pre'] += self.stamp('M2')
        acc_ = 0
        estseg = []
        for q in range(NM):
            if any(x['k'] == 'smem' for x in gaps[q]['pre']):
                estseg.append(acc_); acc_ = 0
            acc_ += 16 + 4 * max(0, gaps[q]['used'] - 2)
        estseg.append(acc_)
        waste = sum(max(0, 2 - gaps[q]['used']) for q in range(E0 + 3, NM - 1))
        for g in range(-1, NM):
            if g >= 0:
                seq.append(mf[g])
            G = gaps[g]
            seq += G['pre'] + G['z'] + G['mem'] + G['v']
        seq += self.stamp('mfend') + tail + self.stamp('tail')
        out = self.finalize(seq)
        self.info.append(f"par {par}: NM {NM} E0 {E0} M2 {M2} est {16*NM+ex} fin {16*NM+fin} ep {best[1]} waste {waste} tail {len(tail)} minlead {self.minlead} "
                         f"waits {self.nwait} nops {self.nnop} NF {NF} barriers {len(self.kept)} estseg {estseg}")
        return out

    def finalize(self, seq):
        out = []
        lds_ops, lds_reg = [], []
        lds_done = bar_done = 0
        pend = {}
        vm_ops = [('warm',)]
        vm_done = 0
        landed = set()
        nm = 0
        hist = []
        xw_idx = {}
        xw_ok = set()

        def emit(it):
            out.append(it)
            n = len([l for l in it['t'].split('\n') if l.strip() and not l.strip().startswith(';')])
            for _ in range(n - 1):
                hist.append(dict(k='x'))
            hist.append(it)

        def dist_since(pred):
            d = 0
            for h in reversed(hist):
                if pred(h):
                    return d
                d += h.get('states', 1)
                if d > 24:
                    break
            return 99

        def war(a, b, it):
            for i, rg in enumerate(lds_reg):
                if rg and rg[0] < b and a < rg[1]:
                    assert i < bar_done, ("WAR on LDS region", it, i, bar_done)
        nwait = nnop = 0
        cur_m0 = None
        cur_so = {}
        owner = []
        for it in seq:
            k = it['k']
            if k == 'smem':
                kk = self.nstamp
                self.nstamp += 1
                assert kk < (13 if self.rot else 17)
                it['t'] = f"s_memtime s[{64+2*kk}:{65+2*kk}]"
                self.stampnames.append(it['name'])
            if it.get('store') and self.nostore:
                continue
            if k == 'vmwait':
                last = max(i for i, x in enumerate(vm_ops) if x == it['tag'])
                emit(dict(k='wait', t=f"s_waitcnt vmcnt({len(vm_ops) - last - 1})"))
                vm_done = max(vm_done, last + 1)
                continue
            if k == 'bar':
                last = -1
                for tg in it['need']:
                    idxs = [i for i, x in enumerate(vm_ops) if x == tg]
                    assert len(idxs) == (8 if tg[0] == 'x' else 3), ("barrier needs un-issued group", tg, it['idx'])
                    last = max(last, idxs[-1])
                wt = ""
                if last + 1 > vm_done:
                    N = len(vm_ops) - (last + 1)
                    assert N <= 63
                    wt += f" vmcnt({N})"
                    vm_done = last + 1
                j = lds_done
                while j < len(lds_ops) and lds_ops[j] <= nm - 10:
                    j += 1
                if 'xw' in it:
                    assert len(xw_idx[it['xw']]) == 2 * self.xgrp[it['xw']]
                    j = max(j, max(xw_idx[it['xw']]) + 1, len(lds_ops) - 15)
                    xw_ok.add(it['xw'])
                if j > lds_done and len(lds_ops) - j <= 15:
                    wt += f" lgkmcnt({len(lds_ops) - j})"
                    lds_done = j
                if wt:
                    emit(dict(k='wait', t="s_waitcnt" + wt))
                if not ('xw' in it and 'b' in self.skip):
                    emit(dict(k='salu', t="s_barrier"))
                bar_done = lds_done
                full = {}
                for i, x in enumerate(vm_ops):
                    full[x] = full.get(x, True) and i < vm_done
                landed = {x for x, f in full.items() if f}
                continue
            if it.get('m0'):
                cur_m0 = it['m0']
            if it.get('sow'):
                cur_so[it['sow'][0]] = it['sow']
            if k == 'none':
                continue
            if it.get('so'):
                assert cur_so[it['so'][0]] == it['so'], (cur_so, it)
            if it.get('dma') or it.get('wregion'):
                if it.get('dma'):
                    assert cur_m0 == it['dma'], (cur_m0, it)
                a, b = it.get('wregion') or it['region']
                war(a, b, it)
                owner = [(rg, tg) for rg, tg in owner if not (rg[0] < b and a < rg[1])] + [((a, b), it.get('tag'))]
            if 'xw' in it:
                xw_idx.setdefault(it['xw'], []).append(len(lds_ops))
            if 'xw' in it and 'w' in self.skip:
                it['t'] = f"ds_read_b64 v[2:3], v{self.V_XW}"
            if 'xr' in it:
                assert it['xr'] in xw_ok
            if 'need' in it:
                assert it['need'] in landed, ("read before landed", it)
                assert (it['region'], it['need']) in owner, ("region overwritten", it)
            if 'needvm' in it:
                assert max(i for i, x in enumerate(vm_ops) if x == it['needvm']) < vm_done
            need = -1
            for r in it.get('r', []) + (it.get('w', []) if k != 'ds' else []):
                if r in pend and pend[r] >= lds_done:
                    need = max(need, pend[r])
            if need >= 0:
                j = need
                while j + 1 < len(lds_ops) and lds_ops[j + 1] <= nm - 9:
                    j += 1
                N = min(len(lds_ops) - (j + 1), 15)
                emit(dict(k='wait', t=f"s_waitcnt lgkmcnt({N})"))
                nwait += 1
                lds_done = len(lds_ops) - N
            rs = set(it.get('r', [])); ws = set(it.get('w', []))
            pad = 0
            if k in ('valu', 'trans', 'vmem', 'ds'):
                pad = max(pad, 8 - dist_since(lambda h: h['k'] == 'mfma' and (set(h['w']) & (rs | ws))))
            if k == 'valu':
                pad = max(pad, 1 - dist_since(lambda h: h['k'] == 'trans' and (set(h['w']) & rs)))
            if it.get('perm'):
                pad = max(pad, 2 - dist_since(lambda h: h['k'] in ('valu', 'trans') and (set(h['w']) & rs)))
            if k in ('valu', 'trans', 'ds'):
                pad = max(pad, 2 - dist_since(lambda h: h.get('store') and (set(h['r']) & ws)))
            if it.get('dma'):
                pad = max(pad, 1 - dist_since(lambda h: h.get('m0')))
            if pad > 0:
                emit(dict(k='nop', t=f"s_nop {pad-1}", states=pad))
                nnop += 1
            emit(it)
            if k == 'ds':
                for r in it.get('w', []):
                    pend[r] = len(lds_ops)
                lds_ops.append(nm)
                lds_reg.append(it.get('region'))
            if k == 'vmem':
                vm_ops.append(it['tag'])
            if k == 'mfma':
                nm += 1
        self.nwait, self.nnop = nwait, nnop
        def keep(x):
            t = x['t']
            if 'L' in self.skip and t.startswith('buffer_load_dwordx4'): return False
            if 'X' in self.skip and t.startswith('buffer_load_dwordx4') and 's[24:27]' in t: return False
            if 'Y' in self.skip and t.startswith('buffer_load_dwordx4') and 's[28:31]' in t: return False
            if 'H' in self.skip and t.startswith('buffer_load_dwordx4'):
                import re
                x['t'] = re.sub(r"v\d+, s\[\d+:\d+\], s\d+ offen offset:(\d+)", lambda m: f"v{self.V_WD['A'][0]}, s[28:31], 0 offen offset:{m.group(1)}", t)
            if 'E' in self.skip and x['k'] in ('valu', 'trans'): return False
            if 'l' in self.skip and t.startswith('buffer_load_dword '): return False
            if 'B' in self.skip and t.startswith('s_barrier'): return False
            if 'd' in self.skip and t.startswith('ds_read'): return False
            if 'W' in self.skip and t.startswith('s_waitcnt'): return False
            return True
        h = [i for i, x in enumerate(out) if x['k'] == 'mfma'][0]
        out = out[:h] + [x for x in out[h:] if keep(x)]
        return '\n'.join(x['t'].rstrip('\n') for x in out) + '\n'

    def ending(self):
        s = ""
        if self.twice:
            s += "s_waitcnt vmcnt(0) lgkmcnt(0)\ns_barrier\ns_add_u32 s101, s101, 1\ns_cmp_eq_u32 s101, 1\ns_cbranch_scc1 L_again\n"
        if self.diag:
            s += "s_waitcnt vmcnt(0)\ns_memtime s[56:57]\ns_memrealtime s[58:59]\ns_waitcnt lgkmcnt(0)\n"
            s += "v_mov_b32 v2, 0\nv_mov_b32 v3, 0\n"
            for k in range(self.nstamp):
                s += f"s_sub_u32 s{64+2*k}, s{64+2*k}, s60\nv_writelane_b32 v2, s{64+2*k}, {k}\n"
            s += f"s_sub_u32 s56, s56, s60\nv_writelane_b32 v2, s56, {self.nstamp}\ns_sub_u32 s98, s98, s60\nv_writelane_b32 v3, s98, 61\nv_writelane_b32 v3, s58, 62\nv_writelane_b32 v3, s62, 63\n"
            s += """s_mov_b32 s24, s22
s_mov_b32 s25, s23
s_mov_b32 s26, 0x1000000
s_mov_b32 s27, 0x20000
v_lshlrev_b32 v4, 3, v0
s_lshl_b32 s3, s2, 11
buffer_store_dwordx2 v[2:3], v4, s[24:27], s3 offen
"""
        if self.enc:
            a, b, kind, sg = self.enc.split(':')
            s += "s_waitcnt vmcnt(0)\n" + ''.join(x['t'] + '\n' for x in self.stamp('end')) + "s_waitcnt lgkmcnt(0)\ns_sub_u32 s66, s66, s64\n"
            if kind == 'cyc':
                s += "s_lshr_b32 s66, s66, 3\n"
            s += ("s_add_u32 s66, 4000, s66\n" if sg == '+' else "s_sub_u32 s66, 6000, s66\n") + "s_min_u32 s66, s66, 20000\n"
            s += "s_memrealtime s[58:59]\ns_waitcnt lgkmcnt(0)\ns_sub_u32 s58, s58, s62\ns_cmp_lt_u32 s58, s66\ns_cbranch_scc1 -6\n"
        if self.spin:
            s += "s_waitcnt vmcnt(0)\n"
            if self.spin == 'end':
                s += "s_memrealtime s[62:63]\n"
            s += "s_waitcnt lgkmcnt(0)\ns_memrealtime s[58:59]\ns_waitcnt lgkmcnt(0)\ns_sub_u32 s58, s58, s62\ns_cmp_lt_u32 s58, 4000\ns_cbranch_scc1 -7\n"
        return s + "s_endpgm\n"

    def padded(self, body, par):
        import subprocess, re
        open('pad.s', 'w').write('.amdgcn_target "amdgcn-amd-amdhsa--gfx950"\n.text\nL_again:\ns_mov_b64 exec, -1\n' + body)
        subprocess.run(["clang", "-x", "assembler", "-target", "amdgcn-amd-amdhsa", "-mcpu=gfx950", "-c", "pad.s", "-o", "pad.o"], check=True)
        dis = subprocess.run(["llvm-objdump", "-d", "--mcpu=gfx950", "pad.o"], capture_output=True, text=True).stdout
        addrs = [int(m.group(1), 16) for m in re.finditer(r"// ([0-9A-F]{12}):", dis)][1:]
        lines = [l for l in body.split('\n') if l.strip() and not l.startswith(';')]
        assert len(lines) == len(addrs), (len(lines), len(addrs))
        ins = {}
        page = 1
        while True:
            sh = 4 * (page - 1)
            c = [k for k in range(len(lines)) if page * 4096 <= addrs[k] + sh < page * 4096 + 56]
            if not c:
                break
            good = [k for k in c if lines[k - 1].startswith('v_mfma') and not lines[k].startswith(('s_', 'buffer'))]
            ins[(good + c)[0]] = page
            page += 1
        npad = page - 1
        npad = max(npad, 0)
        for p_ in range(npad + 1, 5):
            ins[len(lines) - 1 - p_] = p_
        npad = max(npad, 4)
        out = [".p2align 12", f"L_body{par}:", "s_mov_b64 exec, -1"]
        for i, l in enumerate(lines):
            if i in ins:
                p = ins[i]
                out.append(f"L_pad{par}_{p}:")
                out.append(f"s_cbranch_execz {'L_pad%d_%d' % (par, p + 4) if p + 4 <= npad else 'L_body%d' % par}")
            out.append(l)
        return '\n'.join(out) + '\n'

    def text(self):
        self.info = []
        parts = [self.build(par).split("@HOP@\n") for par in range(2)]
        assert parts[0][0] == parts[1][0]
        s = header(256, 256, self.LDS)
        if self.twice:
            s += "s_mov_b32 s101, 0\nL_again:\n"
        s += self.prologue() + parts[0][0]
        s += "; visit the first line of every code page once (EXEC = 0, branches only) while the first tiles are in flight\n"
        if self.cls:
            s += "s_mov_b64 exec, 0\ns_bitcmp1_b32 9, s37\ns_cbranch_scc1 L_hop1\n"
        else:
            s += "s_mov_b64 exec, 0\ns_bitcmp1_b32 s37, 0\ns_cbranch_scc1 L_hop1\n"
        for par in range(2):
            if par:
                s += "L_hop1:\n"
            for w in range(3):
                s += f"s_cmp_eq_u32 s36, {w}\ns_cbranch_scc1 L_pad{par}_{w+1}\n"
            s += f"s_branch L_pad{par}_4\n"
        s += "L_exit:\ns_endpgm\n"
        for par in range(2):
            b = self.padded(parts[par][1] + self.ending(), par)
            if par:
                b = b[:-len("s_endpgm\n")] + "L_last:\ns_endpgm\n"
            s += b
        s += footer(512, 102, 256)
        return s


def parse(args):
    o = {}
    for a in args:
        k, v = a.split('=', 1)
        if k in ('sel', 'order'):
            v = v.split(',')
        elif k == 'pxs':
            v = {int(q.split(':')[0]): [int(z) for z in q.split(':')[1]] for q in v.split(',')}
        elif k == 'xfirst':
            v = {int(q.split(':')[0]): int(q.split(':')[1]) for q in v.split(',')}
        elif k in ('xsched', 'blead', 'reread', 'ep', 'xgrp', 'safe1p'):
            v = [int(q) for q in v.split(',')]
        else:
            try:
                v = int(v)
            except ValueError:
                v = v.replace('_', ' ')
        o[k] = v
    return o


if __name__ == '__main__':
    g = Gen(**parse(sys.argv[2:]))
    t = g.text()
    open(sys.argv[1], 'w').write(t)
    print(sys.argv[1], "bytes", len(t), "stamps", g.stampnames)
    for l in g.info:
        print("   ", l)
    if 'verbose' in g.__dict__:
        for p in sorted(g.sched):
            print(p, g.units[p:p + 1] if p >= 0 else '', g.sched[p], 'kept' if p in g.kept else '')
```

```python
import sys
sys.path.insert(0, 'tools')
from common import *

NLOG2E = 0xbfb8aa3b
WSLOT = 12288
XBUF = 32768
XS = 36


def V(t, r, w, tr=False, **kw):
    d = dict(k='trans' if tr else 'valu', t=t, r=[('v', x) for x in r], w=[('v', x) for x in w])
    d.update(kw)
    return d


def rn(r, n=4, o=0):
    return f"{r[0]}[{r[1]+o}:{r[1]+o+n-1}]"


def rl(r, n=4, o=0):
    return [(r[0], r[1] + o + q) for q in range(n)]


class Gen:
    def __init__(self, **o):
        d = dict(L=6, P=5, PA=2, LEAD=26, XL=6, NS=6, NX=3, NW=5, diag=False, sel=None, nostore=False, pol='sc0 sc1', xpol='nt',
                 wpol='', pfpol='', xsp=4, wsp=4, wahead=3, xahead=4, xsched=None, twice=0, parbar=3,
                 pro='p0,x00,x01,w0,S,H,w1,w2,w3', blead=(20, 28, 20, 28), dmaeven=1, dmaeven_until=21, pfmode=0, first=3, nfirst=5,
                 reread=None, order=None, xrot=1, safe=90, NT=8, dspair=1, stsp=14, tast=260, tasb=70, ep=None, xlag=7, rlag=9, stdelay=1, skip='', early=1, kz=16, xfirst={}, cov=3, encsh=3, hoist=0, seeds=0, xs0=None, xs1=None, pfat=None, wfast=0, pxs={}, pxpol='nt', nplain=0, safe1p=(2, 6, 10, 14), cls=1, snake=1, safe1=None, pfpoln=7, smem=0, warmpol='', enc=None, spin=None, rot=0, xgrp=(2, 2, 1, 1))
        d.update(o)
        self.__dict__.update(d)
        self.W0 = self.NX * XBUF
        self.CONST = self.W0 + self.NW * WSLOT
        self.LDS = self.CONST + 1024
        self.STG = 0
        assert self.LDS <= 163840
        self.w_early = [x[0] for x in self.pro.split(',') if x[0] in 'wx'][0] == 'w'
        self.q_early = 'q' in self.pro.split(',')

    V_DUM = 2
    V_XD = (6, 7, 8, 9)
    V_WD = {'A': (10, 11, 12), 'B': (13, 14, 15)}
    V_RA = 16
    V_RB = 22
    V_XA = (34, 35, 36, 37)
    V_XH = (38, 39, 40, 41)
    V_ST = {'A': 42, 'F': 43, 'S': 44}
    V_XW, V_XR = 45, 46
    V_CA = {'A': 47, 'B': 48}
    V_CW, V_PF, V_PX = 49, 50, 51
    V_C = 52
    V_PAR = (52, 53, 54, 55)
    V_T = 56
    V_ET = 84
    V_FREE = list(range(100, 144, 4))
    V_ACC = 144

    def srows(self, n):
        return list(range(8)) if n == 0 else list(range(4 * self.par, 4 * self.par + 4))

    def rows(self, g, n):
        return list(range(8)) if g == 'A' else self.srows(n)

    def acc(self, g, n, s):
        if g == 'A':
            return self.V_ACC + (s * 2 + n) * 4
        return self.V_ACC + 64 + (s if n == 0 else 8 + s % 4) * 4

    def stamp(self, name=''):
        if self.spin == name:
            return [dict(k='raw', t="s_memrealtime s[62:63]")]
        if self.enc:
            a, b, kind, sg = self.enc.split(':')
            ins = "s_memtime" if kind == 'cyc' else "s_memrealtime"
            if name in (a, b):
                return [dict(k='raw', t=f"{ins} s[64:65]" if name == a else f"{ins} s[66:67]")]
        if not self.diag or (self.sel and not any(name.startswith(p) for p in self.sel)):
            return []
        return [dict(k='smem', t="STAMP", name=name)]

    def xb(self, c):
        return (c + self.xrot) % self.NX

    def sset(self, reg, base, val, **kw):
        old = self.sval.get(reg)
        self.sval[reg] = (base, val)
        if old and old[0] == base and -32768 <= val - old[1] < 32768:
            if val == old[1]:
                return dict(k='none', t="", **kw)
            return dict(k='salu', t=f"s_addk_i32 {reg}, {val - old[1]}", **kw)
        if base is None:
            if 0 <= val < 32768:
                return dict(k='salu', t=f"s_movk_i32 {reg}, {val}", **kw)
            return dict(k='salu8', t=f"s_mov_b32 {reg}, {val}", **kw)
        if val == 0:
            return dict(k='salu', t=f"s_mov_b32 {reg}, {base}", **kw)
        return dict(k='salu8', t=f"s_add_u32 {reg}, {base}, {val}", **kw)

    def dma_x(self, c, halves=(0, 1)):
        buf = self.xb(c) * XBUF
        out = []
        for hf in halves:
            so = ('s48', 's49')[hf]
            if self.rot:
                out.append(dict(k='salu', t=f"s_add_u32 {so}, {('s8', 's9')[hf]}, s{90+c}", sow=('x', c, hf)))
            else:
                out.append(self.sset(so, ('s8', 's9')[hf], c * 128, sow=('x', c, hf)))
            if self.cov & 1:
                out.append(self.sset('m0', ('s20', 's100')[hf], buf, m0=('x', c, hf)))
            else:
                out.append(self.sset('m0', 's20', buf + hf * 4096, m0=('x', c, hf)))
            for k in ((0, 2, 1, 3) if self.cov & 2 else range(4)):
                out.append(dict(k='vmem', t=f"buffer_load_dwordx4 v{self.V_XD[k]}, s[24:27], {so} offen offset:{k*1024} {self.xpol} lds",
                                tag=('x', c), dma=('x', c, hf), so=('x', c, hf), region=(buf, buf + XBUF)))
        return out

    def dma_w(self, g, t):
        slot = self.wslot[(g, t)]
        if self.rot:
            out = []
            if self.sval.get('s53', (None,))[0] != ('c', t // 2):
                out.append(dict(k='salu8', t=f"s_mul_i32 s53, s{90+t//2}, 448", sow=('w', None)))
                self.sval['s53'] = (('c', t // 2), 0)
            out.append(self.sset('s53', ('c', t // 2), (t % 2) * 28672, sow=('w', g, t)))
        else:
            out = [self.sset('s53', None, t * 28672, sow=('w', g, t))]
        out.append(self.sset('m0', 's21', slot, m0=('w', g, t)))
        for tap in range(3):
            out.append(dict(k='vmem', t=f"buffer_load_dwordx4 v{self.V_WD[g][tap]}, s[28:31], s53 offen offset:{tap*1024} {self.wpol} lds",
                            tag=('w', g, t), dma=('w', g, t), so=('w', g, t), region=(slot, slot + WSLOT)))
        return out

    def pf_w(self, c):
        return [dict(k='salu8', t=f"s_mul_i32 s55, s{90+c}, 448", sow=('p', c)) if self.rot else self.sset('s55', None, c * 57344, sow=('p', c)),
                dict(k='vmem', t=f"buffer_load_dword v{self.V_DUM + c % 2}, v{self.V_PF}, s[28:31], s55 offen {self.pfpol if c < self.pfpoln else ''}", tag=('pf', c), so=('p', c))]

    def px(self, c):
        return [dict(k='vmem', t=f"buffer_load_dword v{self.V_DUM + 3}, v{self.V_PX}, s[24:27], s8 offen offset:{c*128} {self.pxpol}", tag=('px', c))]

    def rd_w(self, g, t, n, tap, h, dst):
        slot = self.wslot[(g, t)]
        win = 0 if slot >= self.W0 else 1
        off = slot - self.W0 + win * 65536 + h * 512
        assert 0 <= off < 65536 and (g == 'B' or win == 0)
        base = (self.V_RA if g == 'A' else self.V_RB + win * 6) + n * 3 + tap
        return dict(k='ds', t=f"ds_read_b64_tr_b16 {rn(dst, 2, 2*h)}, v{base} offset:{off}", w=rl(dst, 2, 2 * h),
                    need=('w', g, t), region=(slot, slot + WSLOT))

    def rd_x(self, t, i, d):
        c, j = t // 2, t % 2
        buf = self.xb(c)
        a = (self.V_XA if i < 8 else self.V_XH)[(buf // 2) * 2 + j]
        off = (buf % 2) * XBUF + (i * 2048 if i < 8 else 0)
        return dict(k='ds', t=f"ds_read_b128 {rn(d)}, v{a} offset:{off}", w=rl(d), need=('x', c), region=(buf * XBUF, (buf + 1) * XBUF))

    def mfma(self, g, n, s, wreg, xr, first):
        a = self.acc(g, n, s)
        c = "0" if first else f"v[{a}:{a+3}]"
        return dict(k='mfma', t=f"v_mfma_f32_16x16x32_bf16 v[{a}:{a+3}], {rn(wreg)}, {rn(xr)}, {c}",
                    r=rl(wreg) + rl(xr), w=[('v', a + q) for q in range(4)], ops=(wreg, xr))

    def const_reads(self):
        o = []
        for q, (g, n) in enumerate((('A', 0), ('A', 1), ('B', 0), ('B', 1))):
            d = self.V_C + q * 8
            off = n * (64 if g == 'A' else 128)
            o.append(dict(k='ds', t=f"ds_read_b128 v[{d}:{d+3}], v{self.V_CA[g]} offset:{off}", w=rl(('v', d))))
            o.append(dict(k='ds', t=f"ds_read_b128 v[{d+4}:{d+7}], v{self.V_CA[g]} offset:{512+off}", w=rl(('v', d + 4))))
        return o

    def epi_pair(self, g, n, s, hh, j):
        a = self.acc(g, n, s) + 2 * hh
        T = self.V_ET + (j % self.NT) * 2
        sc = self.V_C + (n + (2 if g == 'B' else 0)) * 8 + 2 * hh
        sh = sc + 4
        d = self.acc(g, 0, s) + 2 * n + hh if g == 'A' else self.acc(g, n, s) + hh
        return [[V(f"v_pk_fma_f32 v[{a}:{a+1}], v[{a}:{a+1}], v[{sc}:{sc+1}], v[{sh}:{sh+1}]", [a, a + 1, sc, sc + 1, sh, sh + 1], [a, a + 1], pk=True,
                   alt=[V(f"v_fma_f32 v{a+i}, v{a+i}, v{sc+i}, v{sh+i}", [a + i, sc + i, sh + i], [a + i]) for i in range(2)])],
                [V(f"v_exp_f32 v{T+i}, v{a+i}", [a + i], [T + i], True) for i in range(2)],
                [V(f"v_pk_fma_f32 v[{T}:{T+1}], v[{T}:{T+1}], s[50:51], s[50:51]", [T, T + 1], [T, T + 1], pk=True,
                   alt=[V(f"v_fma_f32 v{T+i}, v{T+i}, s50, s50", [T + i], [T + i]) for i in range(2)])],
                [V(f"v_rcp_f32 v{T+i}, v{T+i}", [T + i], [T + i], True) for i in range(2)],
                [V(f"v_pk_mul_f32 v[{T}:{T+1}], v[{a}:{a+1}], v[{T}:{T+1}]", [a, a + 1, T, T + 1], [T, T + 1], pk=True,
                   alt=[V(f"v_mul_f32 v{T+i}, v{a+i}, v{T+i}", [a + i, T + i], [T + i]) for i in range(2)])],
                [V(f"v_cvt_pk_bf16_f32 v{d}, v{T}, v{T+1}", [T, T + 1], [d])]]

    def store(self, d, va, so, plain=False):
        return dict(k='vmem', t=f"buffer_store_dwordx4 v[{d}:{d+3}], v{va}, s[32:35], s{so} offen {'' if plain else self.pol}".rstrip(),
                    r=rl(('v', d)), store=True, tag=('st',))

    def epi_schedule(self, gaps, tiles, tile_end, NM, ep, commit):
        import random
        bmin0, ntrmax0, fmax0 = ep[:3]
        rng = random.Random(ep[3]) if len(ep) > 3 and ep[3] else None
        bmin, ntrmax, fmax = bmin0, ntrmax0, fmax0
        jobs = []
        posts = {}
        for g, n, s in tiles:
            key = ('A', s) if g == 'A' else ('W', n, s)
            for hh in range(2):
                jobs.append(dict(st=self.epi_pair(g, n, s, hh, len(jobs)), i=0, rdy=tile_end[(g, n, s)] + 3, key=key, j=len(jobs)))
            if key in posts:
                continue
            if g == 'A':
                pk = self.acc('A', 0, s)
                posts[key] = dict(left=4, rdy=None, nxt=None, st=[
                    ('perm', V(f"v_permlane16_swap_b32 v{pk}, v{pk+2}", [pk, pk + 2], [pk, pk + 2], perm=True), 0),
                    ('perm', V(f"v_permlane16_swap_b32 v{pk+1}, v{pk+3}", [pk + 1, pk + 3], [pk + 1, pk + 3], perm=True), 1),
                    ('store', self.store(pk, self.V_ST['A'], 40 + s), 0)])
            else:
                a = self.acc(g, n, s)
                item = s if n == 0 else 8 + s % 4
                rg = (self.STG, self.STG + 24576)
                pi = item // 2
                grp = [q for q, z in enumerate(self.xgrp) for _ in range(z)][pi]
                posts[key] = dict(left=2, rdy=None, nxt=[('G', grp)], st=[
                    ('dsw', dict(k='ds', t=f"ds_write_b64 v{self.V_XW}, v[{a}:{a+1}] offset:{item*1024}", r=rl(('v', a), 2), w=[], wregion=rg, xw=grp), self.xlag)])
                if s % 2 == 0:
                    if ('G', grp) not in posts:
                        posts[('G', grp)] = dict(left=2 * self.xgrp[grp], rdy=None, nxt=[], st=[('bar', dict(k='bar', need=[], idx=('G', grp), xw=grp), 0)])
                    posts[('G', grp)]['nxt'].append(('X', pi))
                    posts[('X', pi)] = dict(left=1, rdy=None, nxt=None, st=[
                        ('dsr', dict(k='ds', t=f"ds_read_b128 v[{a}:{a+3}], v{self.V_XR} offset:{item*1024}", w=rl(('v', a)), xr=grp), self.rlag),
                        ('storeb', self.store(a, self.V_ST['F' if n == 0 else 'S'], 56 + s // 2, pi >= 6 - self.nplain), 0)])
        extra = 0
        tail = []
        g = min(jb['rdy'] for jb in jobs)
        laststore = -99
        ta_free = 0
        NT = self.NT

        def ready(jb, g):
            st, j = jb['i'], jb['j']
            if st >= 6 or jb['rdy'] > g:
                return False
            if st == 0 and j > 0 and jobs[j - 1]['i'] == 0:
                return False
            if st == 1 and j >= NT and not (jobs[j - NT]['i'] >= 6 and jobs[j - NT]['rdy'] <= g):
                return False
            if st == 0 and j >= NT + 2 and jobs[j - NT - 2]['i'] < 6:
                return False
            if st == 5 and any(jobs[q]['i'] < 5 for q in range(max(0, j - 3), j)):
                return False
            return True

        def arrive(key, g):
            S = posts[key]
            S['left'] -= 1
            S['t'] = max(S.get('t', 0), g)
            if S['left'] == 0:
                S['rdy'] = S['t']

        def take(jb, g, out):
            out.append(jb['st'][jb['i']].pop(0))
            if not jb['st'][jb['i']]:
                jb['i'] += 1
                jb['rdy'] = g + 1
                if jb['i'] == 6:
                    arrive(jb['key'], g + 1)

        def ptake(S, g, out, intail):
            kind, it, lag = S['st'].pop(0)
            out.append(it)
            lag = min(lag, 1) if intail else lag
            S['rdy'] = g + lag
            if not S['st'] and S['nxt']:
                for y in S['nxt']:
                    arrive(y, g + lag)

        def pready(kinds, g):
            return [S for S in posts.values() if S['st'] and S['st'][0][0] in kinds and S['rdy'] is not None and S['rdy'] <= g]
        lo = 0
        while any(S['st'] for S in posts.values()):
            intail = g >= NM - 1
            G = gaps[g] if not intail else dict(mem=[], v=[], used=0, excl=False)
            if G['excl']:
                g += 1
                continue
            while lo < len(jobs) and jobs[lo]['i'] >= 6:
                lo += 1
            act = jobs[lo:lo + NT + 3]
            used = G['used']
            pre, mem, v = [], [], []
            free3 = 0
            for S in pready(('bar',), g)[:1]:
                ptake(S, g, pre, intail)
                extra += 45
            if used <= 1:
                for S in pready(('dsr',), g)[:1]:
                    ptake(S, g, mem, intail); used += 1
            if used == 0:
                for S in pready(('store', 'storeb'), g)[:1]:
                    if intail or (g - laststore >= self.stsp and g > self.stmin):
                        ta_free = max(ta_free, 16 * min(g, NM) + extra) + (self.tast if S['st'][0][0] == 'store' else self.tasb)
                        ptake(S, g, mem, intail)
                        laststore = g
                        extra += 14
                        free3 = 1
            if used == 0 and not free3:
                for S in pready(('dsw',), g)[:1]:
                    ptake(S, g, mem, intail); used += 3
            cap = 3 if free3 else 2

            def cands(st):
                return [jb for jb in act if jb['i'] == st and ready(jb, g)]

            def filler(limit, allow_over, scal=False):
                nonlocal used
                while used < limit:
                    pm = pready(('perm',), g)
                    tr = cands(3) + cands(1)
                    cv = cands(5)
                    room = limit - used
                    if room >= 2 and pm:
                        ptake(pm[0], g, v, intail); used += 2
                    elif room >= 2 and tr and len(cv) < 3:
                        take(tr[0], g, v); used += 2
                    elif cv:
                        take(cv[0], g, v); used += 1
                    elif scal and (cands(2) + cands(0) + cands(4)):
                        l = cands(2) + cands(0) + cands(4)
                        jb = ([x for x in l if not x['st'][x['i']][0].get('pk')] + l)[0]
                        if jb['st'][jb['i']][0].get('pk'):
                            jb['st'][jb['i']] = list(jb['st'][jb['i']][0]['alt'])
                        take(jb, g, v); used += 1
                    elif allow_over and tr:
                        take(tr[0], g, v); used += 2
                    else:
                        break
            pk = cands(4) + cands(2) + [jb for jb in act if jb['i'] == 0 and jb['rdy'] <= g and jb['j'] < NT + 2 + lo][:fmax]
            ntr = sum(len(jb['st'][jb['i']]) for jb in cands(1) + cands(3))
            if intail:
                filler(99, True)
                for jb in pk:
                    if ready(jb, g):
                        take(jb, g, v); used += 1
                tail += pre + mem + v
                extra += 4 * used + (60 if pre or any('xr' in x for x in mem) else 0)
            else:
                if not free3 and len(pk) >= bmin and ntr <= ntrmax and (2 * ntr + used + len(cands(5)) >= 4 or len(pk) >= bmin + 3):
                    if rng:
                        bmin = max(2, bmin0 + rng.choice((-1, 0, 0, 1, 2, 3)))
                        ntrmax = rng.choice((2, 2, 3))
                        fmax = max(1, fmax0 + rng.choice((-1, 0, 0, 1, 2)))
                    filler(5, True)
                    used = max(used, 5)
                    for jb in pk:
                        if ready(jb, g):
                            take(jb, g, v); used += 1
                else:
                    filler(cap, False, True)
                extra += 4 * max(0, used - cap)
                if commit:
                    G['pre'] += pre
                    G['mem'] += mem
                    G['v'] += v
                    G['used'] = used - free3
            g += 1
            assert g < NM + 300
        return extra, ta_free - 16 * NM, tail

    def consts(self):
        m, v, g, b = self.V_PAR
        T = self.V_T
        o = []

        def unpack(src, lo, hi):
            o.append(V(f"v_lshlrev_b32 v{lo}, 16, v{src}", [src], [lo]))
            o.append(V(f"v_and_b32 v{hi}, 0xffff0000, v{src}", [src], [hi]))

        def rnd(lo, hi):
            o.append(V(f"v_cvt_pk_bf16_f32 v{T+10}, v{lo}, v{hi}", [lo, hi], [T + 10]))
            unpack(T + 10, lo, hi)
        unpack(v, T, T + 1)
        o[0]['needvm'] = ('par',)
        o.append(V(f"v_add_f32 v{T}, 0x3727c5ac, v{T}", [T], [T]))
        o.append(V(f"v_add_f32 v{T+1}, 0x3727c5ac, v{T+1}", [T + 1], [T + 1]))
        rnd(T, T + 1)
        o.append(V(f"v_sqrt_f32 v{T}, v{T}", [T], [T], True))
        o.append(V(f"v_sqrt_f32 v{T+1}, v{T+1}", [T + 1], [T + 1], True))
        unpack(g, T + 2, T + 3)
        rnd(T, T + 1)
        o.append(V(f"v_rcp_f32 v{T}, v{T}", [T], [T], True))
        o.append(V(f"v_rcp_f32 v{T+1}, v{T+1}", [T + 1], [T + 1], True))
        unpack(m, T + 4, T + 5)
        rnd(T, T + 1)
        o.append(V(f"v_mul_f32 v{T}, v{T}, v{T+2}", [T, T + 2], [T]))
        o.append(V(f"v_mul_f32 v{T+1}, v{T+1}, v{T+3}", [T + 1, T + 3], [T + 1]))
        unpack(b, T + 6, T + 7)
        rnd(T, T + 1)
        o.append(V(f"v_fma_f32 v{T+6}, -v{T+4}, v{T}, v{T+6}", [T + 4, T, T + 6], [T + 6]))
        o.append(V(f"v_fma_f32 v{T+7}, -v{T+5}, v{T+1}, v{T+7}", [T + 5, T + 1, T + 7], [T + 7]))
        o.append(V(f"v_mul_f32 v{T}, s50, v{T}", [T], [T]))
        o.append(V(f"v_mul_f32 v{T+1}, s50, v{T+1}", [T + 1], [T + 1]))
        o.append(V(f"v_mul_f32 v{T+6}, s50, v{T+6}", [T + 6], [T + 6]))
        o.append(V(f"v_mul_f32 v{T+7}, s50, v{T+7}", [T + 7], [T + 7]))
        o.append(dict(k='ds', t=f"ds_write_b64 v{self.V_CW}, v[{T}:{T+1}]", r=[('v', T), ('v', T + 1)], w=[]))
        o.append(dict(k='ds', t=f"ds_write_b64 v{self.V_CW}, v[{T+6}:{T+7}] offset:512", r=[('v', T + 6), ('v', T + 7)], w=[]))
        return o

    def prologue(self):
        T = self.V_T
        XD = self.V_XD
        s = ""
        if self.spin == 'start' or self.enc:
            s += "s_memrealtime s[62:63]\n"
            if self.enc:
                s += ''.join(x['t'] + '\n' for x in self.stamp('start'))
        if self.diag:
            s += "s_memtime s[60:61]\ns_memrealtime s[62:63]\n"
        s += """s_load_dwordx4 s[24:27], s[0:1], 0
s_load_dwordx8 s[12:19], s[0:1], 16
s_load_dwordx2 s[32:33], s[0:1], 48
"""
        if self.diag:
            s += "s_load_dwordx2 s[22:23], s[0:1], 64\n"
        s += f"""s_cmp_ge_u32 s2, 256
s_cbranch_scc1 L_exit
v_lshrrev_b32 v{T+2}, 6, v0
v_and_b32 v1, 63, v0
s_lshr_b32 s39, s2, 3
; every workgroup touches 16 lines of the code (32 workgroups per XCD cover 64 KiB) so that fetches hit L2
s_getpc_b64 s[8:9]
L_pc:
s_lshl_b32 s3, s39, 11
v_lshrrev_b32 v{T}, 4, v0
v_lshl_add_u32 v{T}, v{T}, 7, s3
v_min_u32 v{T}, L_last-L_pc, v{T}
v_mov_b32 v{T+1}, s9
v_add_co_u32 v{T}, vcc, s8, v{T}
v_readfirstlane_b32 s36, v{T+2}
s_and_b32 s38, s2, 7
v_addc_co_u32 v{T+1}, vcc, 0, v{T+1}, vcc
global_load_dword v{self.V_DUM+2}, v[{T}:{T+1}], off {self.warmpol}
s_and_b32 s37, s39, 3
s_lshr_b32 s3, s39, 2
s_lshl_b32 s38, s38, 3
s_add_u32 s38, s38, s3
s_mul_i32 s40, s38, 229376
s_mul_i32 s3, s36, 3584
s_lshl_b32 s20, s36, 13
s_mul_i32 s21, s36, 3072
s_sub_u32 s4, {23*896}, s3
s_movk_i32 s52, 896
s_bitcmp1_b32 s36, 1
s_cselect_b32 s3, s4, s3
s_cselect_b32 s52, -896, s52
s_add_u32 s8, s40, s3
s_add_u32 s9, s8, s52
s_add_u32 s9, s9, s52
s_sub_u32 s5, s52, 2048
{self.cov1()}; x DMA voffsets (descriptor base is biased by -4096)
v_lshrrev_b32 v{T+3}, 3, v1
v_and_b32 v{T+4}, 7, v1
v_lshrrev_b32 v{T+5}, 4, v1
v_xor_b32 v{T+6}, v{T+4}, v{T+5}
v_mul_u32_u24 v{T+7}, 14336, v{T+3}
v_lshl_add_u32 v{T+7}, v{T+6}, 4, v{T+7}
{self.cov2()}v_add_u32 v{XD[2]}, s5, v{XD[0]}
v_add_u32 v{XD[3]}, s5, v{XD[1]}
s_mul_i32 s3, s39, 42
s_mul_i32 s4, s36, 11
s_add_u32 s3, s3, s4
v_min_u32 v{T+8}, 10, v1
v_add_u32 v{T+8}, s3, v{T+8}
v_min_u32 v{T+8}, 1343, v{T+8}
v_mul_u32_u24 v{T+9}, 2341, v{T+8}
v_lshrrev_b32 v{T+9}, 20, v{T+9}
v_mul_u32_u24 v{T+9}, {401408-57344}, v{T+9}
v_lshl_add_u32 v{self.V_PF}, v{T+8}, 7, v{T+9}
"""
        if self.rot:
            s += f"s_and_b32 s90, s2, 7\ns_cmp_eq_u32 s90, 7\ns_cselect_b32 s90, 3, s90\ns_lshl_b32 s90, s90, 7\n"
        if self.q_early:
            s += self.colsetup() + self.par_addr()
        if self.w_early:
            s += self.prologue_w()
        if self.diag:
            s += "s_memtime s[98:99]\n"
        s += f"""s_mov_b32 s30, {WB}
s_mov_b32 s31, 0x20000
s_waitcnt lgkmcnt(0)
s_mov_b32 s28, s26
s_mov_b32 s29, s27
s_sub_u32 s24, s24, 4096
s_subb_u32 s25, s25, 0
s_mov_b32 s26, {XB+4096}
s_mov_b32 s27, 0x20000
"""
        return s

    def cov1(self):
        if not self.cov & 1:
            return ""
        return """s_add_u32 s100, s20, 4096
s_bitcmp1_b32 s37, 0
s_cselect_b32 s3, s9, s8
s_cselect_b32 s9, s8, s9
s_cselect_b32 s4, s100, s20
s_cselect_b32 s100, s20, s100
s_mov_b32 s8, s3
s_mov_b32 s20, s4
"""

    def cov2(self):
        T, XD = self.V_T, self.V_XD
        if not self.cov & 2:
            return f"""v_add_u32 v{XD[0]}, 4096, v{T+7}
v_xor_b32 v{XD[1]}, 64, v{XD[0]}
v_add_u32 v{XD[1]}, {114688-1024}, v{XD[1]}
"""
        return f"""s_bitcmp1_b32 s37, 1
s_cselect_b32 s3, 114688, 0
s_sub_u32 s4, {114688+3072}, s3
s_addk_i32 s3, 4096
v_xor_b32 v{XD[1]}, 64, v{T+7}
v_add_u32 v{XD[0]}, s3, v{T+7}
v_add_u32 v{XD[1]}, s4, v{XD[1]}
"""

    def cov3(self):
        T = self.V_T
        if not self.cov & 2:
            return ""
        return f"""s_bitcmp1_b32 s37, 1
s_cselect_b32 s5, 1088, 0
v_xor_b32 v{T+5}, s5, v{T+5}
"""

    def colsetup(self):
        return """s_lshl_b32 s6, s37, 8
s_lshr_b32 s4, s37, 1
s_mul_i32 s7, s4, 448
s_add_u32 s7, s7, 192
s_mul_i32 s4, s4, 192
s_sub_u32 s10, s6, s4
s_add_u32 s10, s10, 128
"""

    def prologue_w(self):
        T = self.V_T
        WA, WBr = self.V_WD['A'], self.V_WD['B']
        return ('' if self.q_early else self.colsetup()) + f"""s_lshl_b32 s3, s36, 2
s_and_b32 s3, s3, 4
v_and_b32 v{T+5}, 1, v{T+5}
v_lshl_add_u32 v{T+5}, v{T+5}, 1, s3
v_xor_b32 v{T+4}, v{T+4}, v{T+5}
s_mul_i32 s3, s36, 7168
v_mul_u32_u24 v{T+3}, 896, v{T+3}
v_lshl_add_u32 v{T+3}, v{T+4}, 4, v{T+3}
v_add_u32 v{T+3}, s3, v{T+3}
v_add_u32 v{WA[0]}, s6, v{T+3}
v_add_u32 v{WA[1]}, {401408-1024}, v{WA[0]}
v_add_u32 v{WA[2]}, {802816-2048}, v{WA[0]}
s_sub_u32 s11, s7, 64
v_mov_b32 v{T+5}, s10
v_mov_b32 v{T+6}, s11
v_cmp_gt_u32 vcc, 4, v{T+4}
s_mov_b32 s50, {NLOG2E:#x}
s_mov_b32 s51, s50
s_mov_b32 s34, {XB}
s_mov_b32 s35, 0x20000
v_cndmask_b32 v{T+5}, v{T+6}, v{T+5}, vcc
v_add_u32 v{WBr[0]}, v{T+5}, v{T+3}
v_add_u32 v{WBr[1]}, {401408-1024}, v{WBr[0]}
v_add_u32 v{WBr[2]}, {802816-2048}, v{WBr[0]}
"""

    def prologue2(self):
        T = self.V_T
        RA, RB, XA, XH = self.V_RA, self.V_RB, self.V_XA, self.V_XH
        s = f"""; s3 = nu, s4 = mu, s5 = tap step (+-1024)
s_and_b32 s3, s36, 1
s_lshr_b32 s4, s36, 1
s_lshl_b32 s5, s4, 11
s_sub_u32 s5, 1024, s5
v_lshrrev_b32 v{T}, 4, v1
v_bfe_u32 v{T+1}, v1, 2, 2
v_mul_u32_u24 v{T+2}, 3072, v{T}
v_and_b32 v{T+3}, 3, v1
v_lshl_add_u32 v{T+2}, v{T+1}, 7, v{T+2}
v_lshl_add_u32 v{T+2}, v{T+3}, 3, v{T+2}
v_bfe_u32 v{T+4}, v1, 3, 2
v_lshl_add_u32 v{T+2}, v{T+4}, 5, v{T+2}
v_add_u32 v{T+2}, {self.W0 + 1024}, v{T+2}
s_lshl_b32 s11, s3, 6
v_xor_b32 v{RA+1}, s11, v{T+2}
v_xor_b32 v{RA+4}, 32, v{RA+1}
s_lshl_b32 s54, s3, 5
v_xor_b32 v{RB+1}, s54, v{T+2}
v_xor_b32 v{RB+4}, 64, v{RB+1}
"""
        for b in (RA, RA + 3, RB, RB + 3):
            s += f"v_subrev_u32 v{b}, s5, v{b+1}\nv_add_u32 v{b+2}, s5, v{b+1}\n"
        for q in range(6):
            s += f"v_subrev_u32 v{RB+6+q}, 65536, v{RB+q}\n"
        s += f"""; x LDS read addresses
v_and_b32 v{T+1}, 15, v1
v_lshrrev_b32 v{T+2}, 1, v{T+1}
v_xor_b32 v{T+4}, v{T+2}, v{T}
v_lshlrev_b32 v{T+5}, 7, v{T+1}
v_lshl_add_u32 v{T+5}, v{T+4}, 4, v{T+5}
{self.cov3()}s_lshl_b32 s5, s4, 14
v_add_u32 v{XA[0]}, s5, v{T+5}
s_sub_u32 s5, {15*2048}, s5
v_add_u32 v{XH[0]}, s5, v{T+5}
v_xor_b32 v{XA[1]}, 64, v{XA[0]}
v_xor_b32 v{XH[1]}, 64, v{XH[0]}
v_add_u32 v{XA[2]}, 65536, v{XA[0]}
v_add_u32 v{XA[3]}, 65536, v{XA[1]}
v_add_u32 v{XH[2]}, 65536, v{XH[0]}
v_add_u32 v{XH[3]}, 65536, v{XH[1]}
s_mul_i32 s5, s4, {15*896}
s_add_u32 s40, s40, s5
"""
        for q in range(1, 8):
            s += f"s_add_u32 s{40+q}, s{39+q}, s52\n"
        s += "s_cmp_eq_u32 s3, 0\n"
        for q in range(4):
            s += f"s_cselect_b32 s{56+q}, s{40+2*q}, s{41+2*q}\n"
        s += f"""; A store offset
v_mul_u32_u24 v{T+5}, 14336, v{T+1}
v_lshrrev_b32 v{T+6}, 1, v{T}
v_lshl_add_u32 v{T+5}, v{T+6}, 4, v{T+5}
v_and_b32 v{T+7}, 1, v{T}
v_lshl_add_u32 v{T+5}, v{T+7}, 5, v{T+5}
s_add_u32 s5, s6, s11
v_add_u32 v{self.V_ST['A']}, s5, v{T+5}
s_lshl_b32 s5, s3, 1
v_or_b32 v{T+6}, s5, v{T+6}
v_and_b32 v{T+2}, 3, v{T+2}
v_xor_b32 v{T+6}, v{T+6}, v{T+2}
v_lshlrev_b32 v{T+5}, 6, v{T+1}
v_lshl_add_u32 v{T+5}, v{T+6}, 4, v{T+5}
v_lshl_add_u32 v{T+5}, v{T+7}, 3, v{T+5}
s_mul_i32 s5, s4, 12288
s_add_u32 s5, s5, {self.STG}
v_add_u32 v{self.V_XW}, s5, v{T+5}
; exchange read address and B store offsets
v_lshrrev_b32 v{T+5}, 2, v1
v_bfe_u32 v{T+6}, v1, 3, 2
v_xor_b32 v{T+6}, v{T+6}, v{T+3}
v_lshlrev_b32 v{T+7}, 6, v{T+5}
v_lshl_add_u32 v{T+7}, v{T+6}, 4, v{T+7}
s_lshl_b32 s4, s3, 10
s_add_u32 s5, s5, s4
v_add_u32 v{self.V_XR}, s5, v{T+7}
v_mul_u32_u24 v{T+5}, 14336, v{T+5}
v_lshl_add_u32 v{T+5}, v{T+3}, 4, v{T+5}
v_add_u32 v{self.V_ST['F']}, s10, v{T+5}
v_add_u32 v{self.V_ST['S']}, s7, v{T+5}
v_and_b32 v{T+5}, 1, v1
v_mul_i32_i24 v{T+5}, s52, v{T+5}
v_add_u32 v{self.V_PX}, v{T+5}, v{self.V_XD[0]}
; constants
v_lshlrev_b32 v{T+5}, 4, v{T}
v_add_u32 v{T+5}, {self.CONST}, v{T+5}
s_lshl_b32 s4, s3, 7
v_add_u32 v{self.V_CA['A']}, s4, v{T+5}
s_add_u32 s4, s11, 256
v_add_u32 v{self.V_CA['B']}, s4, v{T+5}
v_lshlrev_b32 v{self.V_CW}, 3, v1
v_add_u32 v{self.V_CW}, {self.CONST}, v{self.V_CW}
"""
        if not self.q_early:
            s += self.par_addr()
        if self.rot:
            for c in range(1, 7):
                s += f"s_add_u32 s{90+c}, s{89+c}, 128\ns_cmp_eq_u32 s{90+c}, 896\ns_cselect_b32 s{90+c}, 0, s{90+c}\n"
        return s

    def par_addr(self):
        T = self.V_T + 12
        return f"""s_sub_u32 s4, s10, 128
s_sub_u32 s5, s7, 192
v_mov_b32 v{T}, s6
v_mov_b32 v{T+1}, s4
v_cmp_gt_u32 vcc, 32, v1
v_mov_b32 v{T+2}, s5
s_nop 0
v_cndmask_b32 v{T}, v{T+1}, v{T}, vcc
v_cmp_gt_u32 vcc, 48, v1
s_nop 1
v_cndmask_b32 v{T}, v{T+2}, v{T}, vcc
v_lshl_add_u32 v{T}, v1, 2, v{T}
"""

    def par_loads(self):
        T = self.V_T + 12
        return [dict(k='vmem', t=f"global_load_dword v{self.V_PAR[q]}, v{T}, s[{12+2*q}:{13+2*q}]", tag=('par',)) for q in range(4)]

    def build(self, par):
        self.par = par
        self.sval = {}
        self.nstamp = 0
        self.stampnames = []
        L, P, PA, LEAD, NX, NW, NS = self.L, self.P, self.PA, self.LEAD, self.NX, self.NW, self.NS
        nb = (14 - L) // 2
        assert L % 2 == 0 and P <= L
        units = []
        for t in range(14):
            units.append(('A', t))
            if t < 2 * nb:
                units.append(('B', t))
        lag = list(range(2 * nb, 14))
        nre = max(0, len(lag) - NS)
        reread = self.reread if self.reread is not None else lag[len(lag) - 2 - nre:len(lag) - 2]
        order2 = [12, 13] + sorted(reread) + [t for t in lag[:-2] if t not in reread]
        if self.order:
            units = [(x[0], int(x[1:])) for x in self.order if x[0] in 'AB']
            to2 = [int(x[1:]) for x in self.order if x[0] == 'T']
            P = len(to2)
        else:
            to2 = order2[L - P:]
            units += [('B', t) for t in order2[:L - P]]
        NU = len(units)
        assert sorted(units + [('B', t) for t in to2]) == sorted((g_, t) for g_ in 'AB' for t in range(14))
        kA = units.index(('A', 14 - PA))
        assert units[kA:kA + PA] == [('A', t) for t in range(14 - PA, 14)]
        upos = {u: k for k, u in enumerate(units)}
        ufirst = dict(upos)
        ulast = dict(upos)
        for t in range(14 - PA, 14):
            ufirst[('A', t)] = kA
            ulast[('A', t)] = kA + PA - 1
        for t in to2:
            upos[('B', t)] = ufirst[('B', t)] = ulast[('B', t)] = NU
        inst = []
        for t in range(14):
            if t in reread:
                inst += [(ufirst[('A', t)], ulast[('A', t)], (t, 1)), (upos[('B', t)], upos[('B', t)], (t, 2))]
            else:
                inst.append((ufirst[('A', t)], upos[('B', t)], (t, 1)))
        inst.sort()
        busy = [-9] * NS
        xset = {}
        for a_, b_, key in inst:
            q = min(range(NS), key=lambda i: busy[i])
            assert busy[q] < a_, ("x register sets exhausted", key)
            busy[q] = b_
            xset[key] = q

        def xinst(g, t):
            return (t, 2) if (g == 'B' and t in reread) else (t, 1)

        def xreg(g, t, i):
            return ('a', xset[xinst(g, t)] * XS + i * 4)
        ring = [('a', r) for r in range(NS * XS, 256, 4)] + [('v', r) for r in self.V_FREE]
        NF = len(ring)
        self.wslot = {}
        mf = []
        frags = {}
        xuse = {}
        unit_first = {}
        seen = set()
        tile_end = {}
        lastuse = {}

        def add(g, t, n, s, tap, reg):
            i = s + tap - 1
            if i < 0:
                return
            first = (g, n, s) not in seen
            seen.add((g, n, s))
            xuse.setdefault((xinst(g, t), i), [len(mf), 0])[1] = len(mf)
            frags.setdefault((g, t, n, tap), dict(first=len(mf), reg=reg))['last'] = len(mf)
            lastuse[reg] = lastuse[xreg(g, t, i)] = len(mf)
            mf.append(self.mfma(g, n, s, reg, xreg(g, t, i), first))
            tile_end[(g, n, s)] = len(mf) - 1
        for k, (g, t) in enumerate(units):
            if kA < k < kA + PA:
                unit_first[(g, t)] = unit_first[units[kA]] + 46 * (k - kA)
                continue
            unit_first[(g, t)] = len(mf)
            if k == kA:
                for s in range(8):
                    for n in range(2):
                        for q in range(PA):
                            for tap in range(3):
                                add(g, t + q, n, s, tap, ring[(6 * k + (n * PA + q) * 3 + tap) % NF])
            else:
                for n in range(2):
                    for s in self.rows(g, n):
                        for tap in ((2, 1, 0) if (self.snake and s % 2) else (0, 1, 2)):
                            add(g, t, n, s, tap, ring[(6 * k + n * 3 + tap) % NF])
        M2 = len(mf)
        keep = {xreg('B', t, i) for t in to2 for i in range(9)}
        pool = sorted((lu, r) for r, lu in lastuse.items() if r not in keep)
        assert len(pool) >= 6 * P, (len(pool), P)
        for n in range(2):
            for s in self.rows('B', n):
                for q, t in enumerate(to2):
                    for tap in range(3):
                        add('B', t, n, s, tap, pool[(n * P + q) * 3 + tap][1])
        NM = len(mf)
        assert NM == 14 * (80 + par)
        XL = self.XL
        bpos = [unit_first[u] - (self.blead[k - 1] if 1 <= k <= len(self.blead) else LEAD + XL) - 1 for k, u in enumerate(units)]
        bpos[kA] -= 3 * (PA - 1) * 2
        if PA > 1 and self.early:
            bpos[kA + 1] = unit_first[units[kA]] + self.kz
        need = [[] for u in units]
        for u in units:
            need[ufirst[u]].append(('w',) + u)
        xbar = {}
        for c in range(7):
            xbar[c] = ufirst[('A', 2 * c)]
            need[xbar[c]].append(('x', c))
        bpos.append(M2 - LEAD - XL - 1 - 3 * P)
        assert bpos == sorted(bpos)
        need.append([('w', 'B', t) for t in to2])
        bpos.append(M2)
        need.append([])
        nbar = len(bpos)
        pro = self.pro.split(',')
        sched = {p: [] for p in range(-1, nbar)}
        relbar = set()
        xrel = {}
        for c in range(7):
            xrel[c] = max(min(upos[('B', t)] + 2, NU + 1) if t in reread else (ufirst if self.early else ulast)[('A', t)] + 1 for t in (2 * c, 2 * c + 1))
        pp = -1
        for c in range(7):
            if f'x{c}1' in pro:
                p = -1
            else:
                p = max(xrel[c - NX] if c >= NX else 0, xbar[c] - self.xahead, pp + 1)
                if self.xsched:
                    p = self.xsched[c]
                xs_par = (self.xs0, self.xs1)[par]
                if xs_par:
                    p = xs_par[c]
                if c >= NX:
                    relbar.add(p)
            assert p < xbar[c]
            pp = p
            sched[p].append(('x', c))
        stg_rel = max(xrel[c] for c in range(7 - NX, 7) if self.xb(c) == 0)
        assert stg_rel < nbar
        relbar.add(max(stg_rel, NU))
        slots = [[-1, self.W0 + i * WSLOT] for i in range(NW)]
        for i in range(5):
            a_ = self.W0 - 65536 + i * WSLOT
            av = max(xrel[c] for c in range(7 - NX, 7) if self.xb(c) * XBUF < a_ + WSLOT and a_ < (self.xb(c) + 1) * XBUF)
            slots.append([av, a_])
        pp = -1
        for k, u in enumerate(units + [('B', t) for t in to2]):
            sl = min(slots if u[0] == 'B' else slots[:NW], key=lambda x: x[0])
            p = max(sl[0], 0, pp)
            if k < NW:
                p = max(p, k - self.wahead)
            if self.dmaeven and p % 2 == self.dmaeven % 2 and p + 2 < ufirst[u] + 1 and k < self.dmaeven_until:
                p += 1
            if f'w{k}' in pro:
                p = -1
            else:
                relbar.add(p)
            assert p < ufirst[u], (k, u, p)
            pp = p
            self.wslot[u] = sl[1]
            sl[0] = (kA + 1 if (self.early and PA > 1 and kA <= k < kA + PA) else ufirst[u] + (1 if (self.wfast and 0 < k < min(kA, self.wfast)) else 2)) if k < NU else 999
            sched[p].append(('w', u))
        self.sched = sched
        self.units = units

        seq = self.stamp('p0')
        donew = done2 = False
        for q, tok in enumerate(pro):
            if tok[0] in 'wS' and not donew:
                if not self.w_early:
                    seq.append(dict(k='raw', t=self.prologue_w()))
                donew = True
            if tok[0] == 'p':
                seq += self.pf_w(int(tok[1]))
            elif tok[0] == 'x':
                seq += self.dma_x(int(tok[1]), (int(tok[2]),))
            elif tok[0] == 'w':
                seq += self.dma_w(*units[int(tok[1:])])
            elif tok == 'H':
                seq.append(dict(k='raw', t="@HOP@"))
                seq += self.stamp('ph')
            elif tok == 't':
                seq += self.stamp(f'pt{q}')
            elif tok[0] == 'v':
                seq.append(dict(k='raw', t=f"s_waitcnt vmcnt({tok[1:]})"))
            elif tok == 'm':
                t_ = "s_lshl_b32 s3, s39, 2\ns_add_u32 s3, s3, s36\ns_min_u32 s3, s3, 111\ns_lshl_b32 s3, s3, 8\ns_add_u32 s4, s28, s3\ns_addc_u32 s5, s29, 0\n"
                for tap in range(3):
                    for q_ in range(4):
                        t_ += f"s_load_dword s{78 + tap*4 + q_}, s[4:5], {tap*401408 + q_*64}\n"
                seq.append(dict(k='raw', t=t_))
            elif tok == 'q':
                seq += self.par_loads()
            elif tok == 'C':
                assert done2
                seq.append(dict(k='vmwait', t='', tag=('par',)))
                seq += self.consts()
            elif tok == 'S':
                assert donew
                seq.append(dict(k='raw', t=self.prologue2()))
                done2 = True
        assert done2
        seq += self.stamp('p2')
        if 'H' not in pro:
            seq.append(dict(k='raw', t="@HOP@"))
            seq += self.stamp('ph')

        gaps = {g: dict(pre=[], z=[], mem=[], v=[], used=0, excl=False) for g in range(-1, NM)}
        g = self.first
        lastl = -1
        pfdone = set()
        issue_end = {}
        for p in range(0, nbar):
            l = sched[p]
            g = max(g, bpos[p] + 3)
            ws_, xs_ = [x for x in l if x[0] == 'w'], [x for x in l if x[0] == 'x']
            nw_ = self.xfirst.get(p, 99)
            pfs_ = [('pf', c_) for c_ in range(1, 7) if self.pfat and self.pfat[c_] == p]
            for kind, arg in ws_[:nw_] + pfs_ + xs_ + ws_[nw_:] + ([('par', 0)] if p == self.parbar and not self.q_early else []):
                if kind == 'x':
                    pxl = self.pxs.get(arg, [])
                    cs = [c_ for c_ in range(7) if f'p{c_}' not in pro and c_ not in pfdone and c_ <= max([arg + self.pfmode // 2] + pxl)]
                    if self.pfat:
                        cs = []
                    pfdone |= set(cs)
                    pf = [y for c_ in cs for y in self.pf_w(c_)]
                    items = self.dma_x(arg, [hf for hf in (0, 1) if f'x{arg}{hf}' not in pro])
                    if pxl:
                        iv = [i_ for i_, y in enumerate(items) if y['k'] == 'vmem'][1] + 1
                        items = items[:iv] + [y for c_ in pxl for y in self.px(c_)] + items[iv:]
                    items = items + pf if self.pfmode % 2 else pf + items
                    sp = self.xsp
                elif kind == 'pf':
                    items = self.pf_w(arg)
                    sp = self.xsp
                elif kind == 'w':
                    items = self.dma_w(*arg)
                    sp = self.wsp
                else:
                    items = self.par_loads()
                    sp = 2
                pend = []
                for it in items:
                    if it['k'] == 'vmem':
                        g = max(g, lastl + 1 + len([x for x in pend if x['k'] != 'none']))
                        gaps[g]['mem'].append(it)
                        gaps[g]['used'] = 2
                        gaps[g]['excl'] = True
                        q = g - 1
                        for x in reversed(pend):
                            gaps[q]['z'].insert(0, x)
                            if x['k'] == 'salu8':
                                gaps[q]['used'] += 1
                            if x['k'] != 'none':
                                q -= 1
                        pend = []
                        issue_end[it['tag']] = g
                        lastl = g
                        g += sp
                    else:
                        pend.append(it)
        self.stmin = lastl if self.stdelay else 0
        vis = {}
        self.kept = []
        for p in range(nbar):
            mine = [tg for tg in need[p] if tg not in vis]
            if mine or p in relbar:
                mine += [tg for q in range(p + 1, nbar) for tg in need[q] if tg not in vis and issue_end.get(tg, 0) + (self.safe1 if (self.safe1 and tg[0] == 'w' and p in self.safe1p) else self.safe) <= bpos[p]]
                for tg in mine:
                    vis[tg] = max(bpos[p], -1)
                gaps[max(bpos[p], -1)]['pre'].append(dict(k='bar', need=mine, idx=p))
                self.kept.append(p)
            gaps[max(bpos[p], -1)]['pre'] += self.stamp(f'B{p:02d}')
        allr = []
        for (g, t, n, tap), f in frags.items():
            if self.wfast and upos[(g, t)] < min(kA, self.wfast) and upos[(g, t)] > 0:
                f['first'] = min(f['first'], unit_first[(g, t)] + 3 + tap)
            allr.append((f['first'], f['last'], f['reg'], [self.rd_w(g, t, n, tap, h, f['reg']) for h in range(2)], ('w', g, t)))
        for ((t, ph), i), (a, b) in xuse.items():
            d = ('a', xset[(t, ph)] * XS + i * 4)
            if ph == 2 and t in to2:
                a = min(a, M2 + i)
            if ph == 1 and t >= 14 - PA:
                a = min(a, unit_first[units[kA]] + 10 + 2 * i + (16 if t > 14 - PA else 0))
            allr.append((a, b, d, [self.rd_x(t, i, d)], ('x', t // 2)))
        allr.sort(key=lambda x: x[0])
        reads = []
        prev_last = {}
        for a, b, reg, items, tg in allr:
            e = max(vis[tg], prev_last.get(reg, -1))
            prev_last[reg] = b
            for it in items:
                reads.append([a - LEAD, e, it, a])
        nxt = 10 ** 9
        E0 = min(tile_end.values())
        if self.hoist:
            emax = -1
            for r in reads:
                emax = max(emax, r[1])
                if r[0] > E0 and emax < E0:
                    r[0] = E0 + 1
        cnt = 0
        for r in reversed(reads):
            if self.dspair and nxt < 10 ** 9 and nxt >= E0 and cnt == 1 and gaps[nxt]['used'] == 0 and r[0] + 6 >= nxt:
                r[0] = nxt
                cnt = 2
                continue
            cnt = 1
            q = min(r[0], nxt - (2 if (self.dspair and nxt >= E0) else 1))
            while q >= 0 and gaps[q]['excl']:
                q -= 1
            r[0] = nxt = q
        cur = -1
        self.minlead = 999
        for tg, e, it, a in reads:
            g = max(tg, e, cur)
            if g < 0 and a >= self.nfirst:
                g = 0
            while g >= 0 and (gaps[g]['excl'] or gaps[g]['used'] >= 2):
                g += 1
            cur = g
            if a > 40:
                self.minlead = min(self.minlead, a - g)
            assert g < a, (g, a, it)
            gaps[g]['mem'].append(it)
            gaps[g]['used'] += 1

        def fill(items, g):
            for it in items:
                g += 1
                while gaps[g]['used'] > 0:
                    g += 1
                gaps[g]['mem' if it['k'] == 'ds' else 'v'].append(it)
                gaps[g]['used'] = 3 if (it['k'] == 'ds' and it.get('r')) else 2
            return g
        g = fill(self.consts(), bpos[self.parbar + 4] + 1) if 'C' not in pro else 0
        assert g < E0 - 90
        g = fill(self.const_reads(), E0 - 90)
        assert g < E0 - 8
        tiles = [('A', n, s) for s in range(8) for n in range(2)] + [('B', n, s) for n in range(2) for s in self.rows('B', n)]
        best = None
        for ep in ([tuple(self.ep)] if self.ep else [(b, n_, f) for b in range(3, 11) for n_ in (2, 3) for f in (2, 3, 4, 5)]):
            ex, fin, tl = self.epi_schedule(gaps, tiles, tile_end, NM, ep, False)
            if best is None or fin < best[0]:
                best = (fin, ep)
        for sd in range(1, self.seeds + 1):
            ep = (3 + sd % 4, 2, 2 + (sd // 4) % 3, sd)
            ex, fin, tl = self.epi_schedule(gaps, tiles, tile_end, NM, ep, False)
            if fin < best[0]:
                best = (fin, ep)
        ex, fin, tail = self.epi_schedule(gaps, tiles, tile_end, NM, best[1], True)
        gaps[tile_end[('A', 1, 7)]]['pre'] += self.stamp('Aend')
        gaps[M2 - 1]['pre'] += self.stamp('M2')
        acc_ = 0
        estseg = []
        for q in range(NM):
            if any(x['k'] == 'smem' for x in gaps[q]['pre']):
                estseg.append(acc_); acc_ = 0
            acc_ += 16 + 4 * max(0, gaps[q]['used'] - 2)
        estseg.append(acc_)
        waste = sum(max(0, 2 - gaps[q]['used']) for q in range(E0 + 3, NM - 1))
        for g in range(-1, NM):
            if g >= 0:
                seq.append(mf[g])
            G = gaps[g]
            seq += G['pre'] + G['z'] + G['mem'] + G['v']
        seq += self.stamp('mfend') + tail + self.stamp('tail')
        out = self.finalize(seq)
        self.info.append(f"par {par}: NM {NM} E0 {E0} M2 {M2} est {16*NM+ex} fin {16*NM+fin} ep {best[1]} waste {waste} tail {len(tail)} minlead {self.minlead} "
                         f"waits {self.nwait} nops {self.nnop} NF {NF} barriers {len(self.kept)} estseg {estseg}")
        return out

    def finalize(self, seq):
        out = []
        lds_ops, lds_reg = [], []
        lds_done = bar_done = 0
        pend = {}
        vm_ops = [('warm',)]
        vm_done = 0
        landed = set()
        nm = 0
        hist = []
        xw_idx = {}
        xw_ok = set()

        def emit(it):
            out.append(it)
            n = len([l for l in it['t'].split('\n') if l.strip() and not l.strip().startswith(';')])
            for _ in range(n - 1):
                hist.append(dict(k='x'))
            hist.append(it)

        def dist_since(pred):
            d = 0
            for h in reversed(hist):
                if pred(h):
                    return d
                d += h.get('states', 1)
                if d > 24:
                    break
            return 99

        def war(a, b, it):
            for i, rg in enumerate(lds_reg):
                if rg and rg[0] < b and a < rg[1]:
                    assert i < bar_done, ("WAR on LDS region", it, i, bar_done)
        nwait = nnop = 0
        cur_m0 = None
        cur_so = {}
        owner = []
        for it in seq:
            k = it['k']
            if k == 'smem':
                kk = self.nstamp
                self.nstamp += 1
                assert kk < (13 if self.rot else 17)
                it['t'] = f"s_memtime s[{64+2*kk}:{65+2*kk}]"
                self.stampnames.append(it['name'])
            if it.get('store') and self.nostore:
                continue
            if k == 'vmwait':
                last = max(i for i, x in enumerate(vm_ops) if x == it['tag'])
                emit(dict(k='wait', t=f"s_waitcnt vmcnt({len(vm_ops) - last - 1})"))
                vm_done = max(vm_done, last + 1)
                continue
            if k == 'bar':
                last = -1
                for tg in it['need']:
                    idxs = [i for i, x in enumerate(vm_ops) if x == tg]
                    assert len(idxs) == (8 if tg[0] == 'x' else 3), ("barrier needs un-issued group", tg, it['idx'])
                    last = max(last, idxs[-1])
                wt = ""
                if last + 1 > vm_done:
                    N = len(vm_ops) - (last + 1)
                    assert N <= 63
                    wt += f" vmcnt({N})"
                    vm_done = last + 1
                j = lds_done
                while j < len(lds_ops) and lds_ops[j] <= nm - 10:
                    j += 1
                if 'xw' in it:
                    assert len(xw_idx[it['xw']]) == 2 * self.xgrp[it['xw']]
                    j = max(j, max(xw_idx[it['xw']]) + 1, len(lds_ops) - 15)
                    xw_ok.add(it['xw'])
                if j > lds_done and len(lds_ops) - j <= 15:
                    wt += f" lgkmcnt({len(lds_ops) - j})"
                    lds_done = j
                if wt:
                    emit(dict(k='wait', t="s_waitcnt" + wt))
                if not ('xw' in it and 'b' in self.skip):
                    emit(dict(k='salu', t="s_barrier"))
                bar_done = lds_done
                full = {}
                for i, x in enumerate(vm_ops):
                    full[x] = full.get(x, True) and i < vm_done
                landed = {x for x, f in full.items() if f}
                continue
            if it.get('m0'):
                cur_m0 = it['m0']
            if it.get('sow'):
                cur_so[it['sow'][0]] = it['sow']
            if k == 'none':
                continue
            if it.get('so'):
                assert cur_so[it['so'][0]] == it['so'], (cur_so, it)
            if it.get('dma') or it.get('wregion'):
                if it.get('dma'):
                    assert cur_m0 == it['dma'], (cur_m0, it)
                a, b = it.get('wregion') or it['region']
                war(a, b, it)
                owner = [(rg, tg) for rg, tg in owner if not (rg[0] < b and a < rg[1])] + [((a, b), it.get('tag'))]
            if 'xw' in it:
                xw_idx.setdefault(it['xw'], []).append(len(lds_ops))
            if 'xw' in it and 'w' in self.skip:
                it['t'] = f"ds_read_b64 v[2:3], v{self.V_XW}"
            if 'xr' in it:
                assert it['xr'] in xw_ok
            if 'need' in it:
                assert it['need'] in landed, ("read before landed", it)
                assert (it['region'], it['need']) in owner, ("region overwritten", it)
            if 'needvm' in it:
                assert max(i for i, x in enumerate(vm_ops) if x == it['needvm']) < vm_done
            need = -1
            for r in it.get('r', []) + (it.get('w', []) if k != 'ds' else []):
                if r in pend and pend[r] >= lds_done:
                    need = max(need, pend[r])
            if need >= 0:
                j = need
                while j + 1 < len(lds_ops) and lds_ops[j + 1] <= nm - 9:
                    j += 1
                N = min(len(lds_ops) - (j + 1), 15)
                emit(dict(k='wait', t=f"s_waitcnt lgkmcnt({N})"))
                nwait += 1
                lds_done = len(lds_ops) - N
            rs = set(it.get('r', [])); ws = set(it.get('w', []))
            pad = 0
            if k in ('valu', 'trans', 'vmem', 'ds'):
                pad = max(pad, 8 - dist_since(lambda h: h['k'] == 'mfma' and (set(h['w']) & (rs | ws))))
            if k == 'valu':
                pad = max(pad, 1 - dist_since(lambda h: h['k'] == 'trans' and (set(h['w']) & rs)))
            if it.get('perm'):
                pad = max(pad, 2 - dist_since(lambda h: h['k'] in ('valu', 'trans') and (set(h['w']) & rs)))
            if k in ('valu', 'trans', 'ds'):
                pad = max(pad, 2 - dist_since(lambda h: h.get('store') and (set(h['r']) & ws)))
            if it.get('dma'):
                pad = max(pad, 1 - dist_since(lambda h: h.get('m0')))
            if pad > 0:
                emit(dict(k='nop', t=f"s_nop {pad-1}", states=pad))
                nnop += 1
            emit(it)
            if k == 'ds':
                for r in it.get('w', []):
                    pend[r] = len(lds_ops)
                lds_ops.append(nm)
                lds_reg.append(it.get('region'))
            if k == 'vmem':
                vm_ops.append(it['tag'])
            if k == 'mfma':
                nm += 1
        self.nwait, self.nnop = nwait, nnop
        def keep(x):
            t = x['t']
            if 'L' in self.skip and t.startswith('buffer_load_dwordx4'): return False
            if 'X' in self.skip and t.startswith('buffer_load_dwordx4') and 's[24:27]' in t: return False
            if 'Y' in self.skip and t.startswith('buffer_load_dwordx4') and 's[28:31]' in t: return False
            if 'H' in self.skip and t.startswith('buffer_load_dwordx4'):
                import re
                x['t'] = re.sub(r"v\d+, s\[\d+:\d+\], s\d+ offen offset:(\d+)", lambda m: f"v{self.V_WD['A'][0]}, s[28:31], 0 offen offset:{m.group(1)}", t)
            if 'E' in self.skip and x['k'] in ('valu', 'trans'): return False
            if 'l' in self.skip and t.startswith('buffer_load_dword '): return False
            if 'B' in self.skip and t.startswith('s_barrier'): return False
            if 'd' in self.skip and t.startswith('ds_read'): return False
            if 'W' in self.skip and t.startswith('s_waitcnt'): return False
            return True
        h = [i for i, x in enumerate(out) if x['k'] == 'mfma'][0]
        out = out[:h] + [x for x in out[h:] if keep(x)]
        return '\n'.join(x['t'].rstrip('\n') for x in out) + '\n'

    def ending(self):
        s = ""
        if self.twice:
            s += "s_waitcnt vmcnt(0) lgkmcnt(0)\ns_barrier\ns_add_u32 s101, s101, 1\ns_cmp_eq_u32 s101, 1\ns_cbranch_scc1 L_again\n"
        if self.diag:
            s += "s_waitcnt vmcnt(0)\ns_memtime s[56:57]\ns_memrealtime s[58:59]\ns_waitcnt lgkmcnt(0)\n"
            s += "v_mov_b32 v2, 0\nv_mov_b32 v3, 0\n"
            for k in range(self.nstamp):
                s += f"s_sub_u32 s{64+2*k}, s{64+2*k}, s60\nv_writelane_b32 v2, s{64+2*k}, {k}\n"
            s += f"s_sub_u32 s56, s56, s60\nv_writelane_b32 v2, s56, {self.nstamp}\ns_sub_u32 s98, s98, s60\nv_writelane_b32 v3, s98, 61\nv_writelane_b32 v3, s58, 62\nv_writelane_b32 v3, s62, 63\n"
            s += """s_mov_b32 s24, s22
s_mov_b32 s25, s23
s_mov_b32 s26, 0x1000000
s_mov_b32 s27, 0x20000
v_lshlrev_b32 v4, 3, v0
s_lshl_b32 s3, s2, 11
buffer_store_dwordx2 v[2:3], v4, s[24:27], s3 offen
"""
        if self.enc:
            a, b, kind, sg = self.enc.split(':')
            s += "s_waitcnt vmcnt(0)\n" + ''.join(x['t'] + '\n' for x in self.stamp('end')) + "s_waitcnt lgkmcnt(0)\ns_sub_u32 s66, s66, s64\n"
            if kind == 'cyc':
                s += f"s_lshr_b32 s66, s66, {self.encsh}\n"
            if kind == 'rt':
                s += "s_sub_u32 s66, s66, 1000\ns_lshl_b32 s66, s66, 3\n"
            s += ("s_add_u32 s66, 4000, s66\n" if sg == '+' else "s_sub_u32 s66, 6000, s66\n") + "s_min_u32 s66, s66, 20000\n"
            s += "s_memrealtime s[58:59]\ns_waitcnt lgkmcnt(0)\ns_sub_u32 s58, s58, s62\ns_cmp_lt_u32 s58, s66\ns_cbranch_scc1 -6\n"
        if self.spin:
            s += "s_waitcnt vmcnt(0)\n"
            if self.spin == 'end':
                s += "s_memrealtime s[62:63]\n"
            s += "s_waitcnt lgkmcnt(0)\ns_memrealtime s[58:59]\ns_waitcnt lgkmcnt(0)\ns_sub_u32 s58, s58, s62\ns_cmp_lt_u32 s58, 4000\ns_cbranch_scc1 -7\n"
        return s + "s_endpgm\n"

    def padded(self, body, par):
        import subprocess, re
        open('pad.s', 'w').write('.amdgcn_target "amdgcn-amd-amdhsa--gfx950"\n.text\nL_again:\ns_mov_b64 exec, -1\n' + body)
        subprocess.run(["clang", "-x", "assembler", "-target", "amdgcn-amd-amdhsa", "-mcpu=gfx950", "-c", "pad.s", "-o", "pad.o"], check=True)
        dis = subprocess.run(["llvm-objdump", "-d", "--mcpu=gfx950", "pad.o"], capture_output=True, text=True).stdout
        addrs = [int(m.group(1), 16) for m in re.finditer(r"// ([0-9A-F]{12}):", dis)][1:]
        lines = [l for l in body.split('\n') if l.strip() and not l.startswith(';')]
        assert len(lines) == len(addrs), (len(lines), len(addrs))
        ins = {}
        page = 1
        while True:
            sh = 4 * (page - 1)
            c = [k for k in range(len(lines)) if page * 4096 <= addrs[k] + sh < page * 4096 + 56]
            if not c:
                break
            good = [k for k in c if lines[k - 1].startswith('v_mfma') and not lines[k].startswith(('s_', 'buffer'))]
            ins[(good + c)[0]] = page
            page += 1
        npad = page - 1
        npad = max(npad, 0)
        for p_ in range(npad + 1, 5):
            ins[len(lines) - 1 - p_] = p_
        npad = max(npad, 4)
        out = [".p2align 12", f"L_body{par}:", "s_mov_b64 exec, -1"]
        for i, l in enumerate(lines):
            if i in ins:
                p = ins[i]
                out.append(f"L_pad{par}_{p}:")
                out.append(f"s_cbranch_execz {'L_pad%d_%d' % (par, p + 4) if p + 4 <= npad else 'L_body%d' % par}")
            out.append(l)
        return '\n'.join(out) + '\n'

    def text(self):
        self.info = []
        parts = [self.build(par).split("@HOP@\n") for par in range(2)]
        assert parts[0][0] == parts[1][0]
        s = header(256, 256, self.LDS)
        if self.twice:
            s += "s_mov_b32 s101, 0\nL_again:\n"
        s += self.prologue() + parts[0][0]
        s += "; visit the first line of every code page once (EXEC = 0, branches only) while the first tiles are in flight\n"
        if self.cls:
            s += "s_mov_b64 exec, 0\ns_bitcmp1_b32 9, s37\ns_cbranch_scc1 L_hop1\n"
        else:
            s += "s_mov_b64 exec, 0\ns_bitcmp1_b32 s37, 0\ns_cbranch_scc1 L_hop1\n"
        for par in range(2):
            if par:
                s += "L_hop1:\n"
            for w in range(3):
                s += f"s_cmp_eq_u32 s36, {w}\ns_cbranch_scc1 L_pad{par}_{w+1}\n"
            s += f"s_branch L_pad{par}_4\n"
        s += "L_exit:\ns_endpgm\n"
        for par in range(2):
            b = self.padded(parts[par][1] + self.ending(), par)
            if par:
                b = b[:-len("s_endpgm\n")] + "L_last:\ns_endpgm\n"
            s += b
        s += footer(512, 102, 256)
        return s


def parse(args):
    o = {}
    for a in args:
        k, v = a.split('=', 1)
        if k in ('sel', 'order'):
            v = v.split(',')
        elif k == 'pxs':
            v = {int(q.split(':')[0]): [int(z) for z in q.split(':')[1]] for q in v.split(',')}
        elif k == 'xfirst':
            v = {int(q.split(':')[0]): int(q.split(':')[1]) for q in v.split(',')}
        elif k in ('xsched', 'blead', 'reread', 'ep', 'xgrp', 'safe1p', 'xs0', 'xs1', 'pfat'):
            v = [int(q) for q in v.split(',')]
        else:
            try:
                v = int(v)
            except ValueError:
                v = v.replace('_', ' ')
        o[k] = v
    return o


if __name__ == '__main__':
    g = Gen(**parse(sys.argv[2:]))
    t = g.text()
    open(sys.argv[1], 'w').write(t)
    print(sys.argv[1], "bytes", len(t), "stamps", g.stampnames)
    for l in g.info:
        print("   ", l)
    if 'verbose' in g.__dict__:
        for p in sorted(g.sched):
            print(p, g.units[p:p + 1] if p >= 0 else '', g.sched[p], 'kept' if p in g.kept else '')
```
